```python
import torch

def _softmax(x, axis=-1):
    return torch.softmax(x, dim=axis)
def _gelu(x):
    return torch.nn.functional.gelu(x, approximate="tanh")
def _silu(x):
    return torch.nn.functional.silu(x)
def _sigmoid(x):
    return torch.sigmoid(x)
def _layernorm(x, axis=-1, eps=1e-5):
    m = x.mean(dim=axis, keepdim=True)
    v = x.var(dim=axis, keepdim=True, unbiased=False)
    return (x - m) / torch.sqrt(v + eps)
def _scatter_add(tgt, idx, src, axis=0):
    return tgt.clone().index_add_(axis, idx, src)
def _segment_sum(src, seg, n):
    out = torch.zeros((n,) + src.shape[1:], dtype=src.dtype)
    return out.index_add_(0, seg, src)
def _pad(x, pw):
    flat = tuple(v for pair in reversed(pw) for v in pair)
    return torch.nn.functional.pad(x, flat)

kernel_name = 'sequential_preLN__compressed_kv_cla__glu_gated_reglu__prompt'

def setup_inputs():

    _w = (lambda a: (lambda t: t.to(torch.bfloat16) if t.is_floating_point() else t)(torch.as_tensor(a)))
    def _A_setup():
        B, H, Sq, Sk, D, M = 1, 32, 2048, 2048, 128, 512
        Dc = 4 * D
        return {
            "x": _w((lambda *s: torch.randn(*s, dtype=torch.bfloat16) * 0.05)(B, Sq, M)),
            "c_kv": _w((lambda *s: torch.randn(*s, dtype=torch.bfloat16) * 0.4)(B, Sk, Dc)),
            "w_q": _w((lambda *s: torch.randn(*s, dtype=torch.bfloat16) * 1.6)(M, H, D) * (M ** -0.5)),
            "w_uk": _w((lambda *s: torch.randn(*s, dtype=torch.bfloat16) * 1.6)(Dc, H, D) * (Dc ** -0.5)),
            "w_uv": _w((lambda *s: torch.randn(*s, dtype=torch.bfloat16) * 0.4)(Dc, H, D) * (Dc ** -0.5)),
            "w_o": _w((lambda *s: torch.randn(*s, dtype=torch.bfloat16) * 0.4)(H, D, M) * ((H * D) ** -0.5)),
        }
    _A_in = _A_setup()

    def _B_setup():
        B, S, D, F = 1, 2048, 512, 1376
        return {
            "x": _w((lambda *s: torch.randn(*s, dtype=torch.bfloat16) * 0.05)(B, S, D)),
            "W_gate": _w((lambda *s: torch.randn(*s, dtype=torch.bfloat16) * 0.2)(D, F) * (2.0 / D) ** 0.5),
            "W_up": _w((lambda *s: torch.randn(*s, dtype=torch.bfloat16) * 0.2)(D, F) * (2.0 / D) ** 0.5),
            "W_down": _w((lambda *s: torch.randn(*s, dtype=torch.bfloat16) * 0.2)(F, D) * (1.0 / F) ** 0.5),
        }
    _B_in = _B_setup()

    return {
        "A_x": _A_in["x"],
        "A_c_kv": _A_in["c_kv"],
        "A_w_q": _A_in["w_q"],
        "A_w_uk": _A_in["w_uk"],
        "A_w_uv": _A_in["w_uv"],
        "A_w_o": _A_in["w_o"],
        "B_x": _B_in["x"],
        "B_W_gate": _B_in["W_gate"],
        "B_W_up": _B_in["W_up"],
        "B_W_down": _B_in["W_down"],
    }

def reference(A_x, A_c_kv, A_w_q, A_w_uk, A_w_uv, A_w_o, B_x, B_W_gate, B_W_up, B_W_down):
    def _A_ref(x, c_kv, w_q, w_uk, w_uv, w_o):
        B, Sq, M = x.shape[0], x.shape[1], x.shape[2]
        Sk = c_kv.shape[1]
        H, D = w_q.shape[1], w_q.shape[2]
        q = torch.einsum("bqm,mhd->bhqd", x, w_q)
        k = torch.einsum("bkc,chd->bhkd", c_kv, w_uk)
        v = torch.einsum("bkc,chd->bhkd", c_kv, w_uv)
        scores = torch.einsum("bhqd,bhkd->bhqk", q, k) * (D ** -0.5)
        off = Sk - Sq
        qi = torch.arange(Sq)[:, None]
        kj = torch.arange(Sk)[None, :]
        cmask = kj <= (qi + off)
        scores = torch.where(cmask[None, None], scores, -1e9)
        p = _softmax(scores, axis=-1)
        ctx = torch.einsum("bhqk,bhkd->bhqd", p, v)
        return torch.einsum("bhqd,hdm->bqm", ctx, w_o)

    def _B_ref(x, W_gate, W_up, W_down):
        gate = torch.einsum("bsd,df->bsf", x, W_gate)
        up = torch.einsum("bsd,df->bsf", x, W_up)
        gate = gate * (lambda x, dt: x.to(dt))(gate > 0, gate.dtype)
        h = gate * up
        return torch.einsum("bsf,fd->bsd", h, W_down)

    x = A_x
    h = x + _A_ref(_layernorm(x, axis=-1), A_c_kv, A_w_q, A_w_uk, A_w_uv, A_w_o)
    h2 = h + _B_ref(_layernorm(h, axis=-1), B_W_gate, B_W_up, B_W_down)
    return h2
```

```python
class Asm:
    def __init__(self):
        self.l = []
    def __call__(self, s):
        if isinstance(s, (list, tuple)):
            for x in s: self(x)
        else:
            self.l.append(s)
    def label(self, n): self.l.append(n + ":")
    def c(self, s): self.l.append("; " + s)
    def text(self): return "\n".join(self.l) + "\n"

def vr(b, n=1): return f"v{b}" if n == 1 else f"v[{b}:{b+n-1}]"
def ar(b, n=1): return f"a{b}" if n == 1 else f"a[{b}:{b+n-1}]"
def sr(b, n=1): return f"s{b}" if n == 1 else f"s[{b}:{b+n-1}]"

def mfma16(d, a, b, c):
    return f"v_mfma_f32_16x16x32_bf16 {d}, {a}, {b}, {c}"

class VM:
    def __init__(self): self.ops = []
    def issue(self, tag): self.ops.append(tag)
    def count_after(self, tag):
        idx = [i for i, t in enumerate(self.ops) if t == tag]
        assert idx, f"tag {tag} never issued"
        return len(self.ops) - 1 - idx[-1]
    def wait(self, tag):
        n = self.count_after(tag)
        assert n <= 63, n
        return f"s_waitcnt vmcnt({n})"

MEM, VAL, SAL = 0, 1, 2
class Weave:
    def __init__(self, mfmas, cap=2):
        self.m = list(mfmas); self.cap = cap
        self.used = [0]*len(self.m)
        self.items = [[] for _ in self.m]
        self.seq = 0
        self.over = 0
        self.tail = []
    def put(self, instr, gap, cost=1, kind=VAL, force=False, last=None):
        n = len(self.m)
        hi = n - 1 if last is None else min(last, n - 1)
        gap = min(gap, hi)
        g = gap
        while g <= hi and self.used[g] + cost > self.cap and self.used[g] != 0:
            g += 1
        if g > hi:
            g = min(range(gap, hi + 1), key=lambda x: (self.used[x], x)); self.over += 1
        self.used[g] += cost
        self.items[g].append((kind, self.seq, instr)); self.seq += 1
        return g
    def at(self, instr, gap, cost=1, kind=VAL):
        self.used[gap] += cost
        self.items[gap].append((kind, self.seq, instr)); self.seq += 1
        return gap
    def emit(self, A):
        for g, m in enumerate(self.m):
            A(m)
            out = []
            for it in sorted(self.items[g], key=lambda x: x[1]):
                if it[0] == MEM:
                    i = len(out)
                    while i > 0 and out[i-1][0] == VAL: i -= 1
                    out.insert(i, it)
                else: out.append(it)
            prev = None
            for it in out:
                if prev is not None and prev[2].startswith("v_exp") and it[0] == VAL and not it[2].startswith("v_exp"):
                    dst = prev[2].split()[1].rstrip(",")
                    if dst in [x.rstrip(",") for x in it[2].split()[2:]]: A("s_nop 0")
                A(it[2]); prev = it
        for ins in self.tail: A(ins)

def srd(A, s, base_lo, base_hi, nbytes):
    A(f"s_mov_b32 s{s}, s{base_lo}")
    A(f"s_mov_b32 s{s+1}, s{base_hi}")
    A(f"s_mov_b32 s{s+2}, {nbytes}")
    A(f"s_mov_b32 s{s+3}, 0x00020000")

def kernel_head(A, name):
    A(".text"); A(f".globl {name}"); A(".p2align 8"); A(f".type {name},@function"); A(f"{name}:")

def kernel_desc(A, name, vgpr, sgpr, accum):
    A('.section .rodata,"a"'); A(".p2align 6"); A(f".amdhsa_kernel {name}")
    A(f"  .amdhsa_next_free_vgpr {vgpr}"); A(f"  .amdhsa_next_free_sgpr {sgpr}"); A(f"  .amdhsa_accum_offset {accum}")
    A("  .amdhsa_group_segment_fixed_size 0"); A("  .amdhsa_kernarg_size 104"); A("  .amdhsa_user_sgpr_count 2")
    A("  .amdhsa_user_sgpr_kernarg_segment_ptr 1"); A("  .amdhsa_system_sgpr_workgroup_id_x 1")
    A("  .amdhsa_float_denorm_mode_32 3")
    A(".end_amdhsa_kernel")

WS_XN   = 0
WS_KV   = 2 << 20
WS_CTX  = 34 << 20
WS_H    = 50 << 20
WS_HR   = 52 << 20
WS_ST   = 54 << 20
WS_HH   = 55 << 20
WS_CS   = 62 << 20
KARG = dict(x=0, ckv=8, wq=16, wuk=24, wuv=32, wo=40, bx=48, wg=56, wu=64, wd=72, out=80, dbg=88, ws=96)

PROF = False
PROF_INS = "s_memrealtime"
WS_PROF = 200 << 20
class Prof:
    def __init__(self, kidx, sbase=80, nmax=8):
        self.k = kidx; self.sb = sbase; self.n = 0; self.nmax = nmax
    def stamp(self, A):
        if not PROF: return
        assert self.n < self.nmax
        A(f"{PROF_INS} s[{self.sb+2*self.n}:{self.sb+2*self.n+1}]"); self.n += 1
    def stamp_instr(self):
        if not PROF: return None
        assert self.n < self.nmax
        r = f"{PROF_INS} s[{self.sb+2*self.n}:{self.sb+2*self.n+1}]"; self.n += 1
        return r
    def flush(self, A, vtmp, ws_lo=None):
        if not PROF: return
        A("s_load_dwordx2 s[76:77], s[0:1], 96"); A("s_waitcnt lgkmcnt(0)")
        A(f"s_add_u32 s76, s76, {WS_PROF}"); A("s_addc_u32 s77, s77, 0"); A("s_mov_b32 s78, 0x1000000"); A("s_mov_b32 s79, 0x00020000")
        A(f"v_lshrrev_b32 v{vtmp}, 6, v0")
        A(f"v_lshlrev_b32 v{vtmp}, 5, v{vtmp}")
        A(f"s_lshl_b32 s75, s2, 8"); A(f"s_add_u32 s75, s75, {self.k * 1024 * 256}")
        A(f"v_add_u32 v{vtmp}, s75, v{vtmp}")
        A(f"v_and_b32 v{vtmp+1}, 63, v0"); A(f"v_cmp_eq_u32 vcc, 0, v{vtmp+1}"); A("s_and_saveexec_b64 s[72:73], vcc")
        for i in range(self.n):
            A(f"v_mov_b32 v{vtmp+1}, s{self.sb+2*i}")
            A(f"buffer_store_dword v{vtmp+1}, v{vtmp}, s[76:79], 0 offen offset:{4*i}")
        A("s_mov_b64 exec, s[72:73]")
```

```python
from asmlib import *

def allreduce64(A, v, t, op="v_add_f32"):
    for r in (8, 4, 2, 1):
        A("s_nop 1")
        A(f"{op}_dpp v{v}, v{v}, v{v} row_ror:{r} row_mask:0xf bank_mask:0xf")
    A(f"v_mov_b32 v{t}, v{v}"); A("s_nop 1")
    A(f"v_permlane16_swap_b32 v{v}, v{t}"); A("s_nop 1")
    A(f"{op} v{v}, v{v}, v{t}")
    A(f"v_mov_b32 v{t}, v{v}"); A("s_nop 1")
    A(f"v_permlane32_swap_b32 v{v}, v{t}"); A("s_nop 1")
    A(f"{op} v{v}, v{v}, v{t}")

QSCALE = 1.4426950408889634 / (128.0 ** 0.5)
import struct
def f2u(f): return struct.unpack("<I", struct.pack("<f", f))[0]

import os
FINE = os.environ.get('K1FINE')
STFLAG = ' sc0 sc1'
def gen_k1(A):
    name = "k1_kernel"
    kernel_head(A, name)
    S_C, S_W, S_X, S_XN, S_KV = 16, 20, 24, 28, 32
    sW, sST, sNT, sISV, sTMP, sTMP2 = 36, 37, 38, 39, 40, 41
    sWOFF, sCROW, sSTB, sM0W, sM0C = 42, 43, 44, 45, 46
    vLane = 1
    vWoff = 2
    vCoff = 6
    vTr = 10
    vCr0 = 14
    vCr1 = 18
    vSt0, vSt1 = 22, 23
    vTr2 = 24
    ACC = 32
    CF = 128
    PK = 160
    TMP = 192
    WRING = 96 * 1024
    def acc(s, rt, t): return ACC + s*32 + (rt*4 + t)*4
    def wfrag(ks, t): return (ks*4 + t)*4

    import asmlib
    P = Prof(0)
    A("s_cmp_ge_u32 s2, 256"); A("s_cbranch_scc1 K1_END")
    P.stamp(A)
    A("s_load_dwordx2 s[4:5], s[0:1], 0"); A("s_load_dwordx2 s[6:7], s[0:1], 8")
    A("s_load_dwordx2 s[8:9], s[0:1], 24"); A("s_load_dwordx2 s[10:11], s[0:1], 32")
    A("s_load_dwordx2 s[12:13], s[0:1], 96")
    A(f"v_and_b32 v{vLane}, 63, v0")
    A("v_lshrrev_b32 v2, 6, v0"); A("s_nop 0"); A(f"v_readfirstlane_b32 s{sW}, v2")
    A(f"s_lshr_b32 s{sTMP}, s2, 3")
    A(f"s_lshr_b32 s{sST}, s{sTMP}, 2")
    A(f"s_and_b32 s{sTMP}, s{sTMP}, 3")
    A(f"s_lshr_b32 s{sISV}, s{sTMP}, 1")
    A(f"s_and_b32 s{sTMP}, s{sTMP}, 1")
    A(f"s_and_b32 s{sNT}, s2, 7"); A(f"s_lshl_b32 s{sNT}, s{sNT}, 1"); A(f"s_add_u32 s{sNT}, s{sNT}, s{sTMP}")
    A("s_waitcnt lgkmcnt(0)")
    if not FINE: P.stamp(A)
    srd(A, S_C, 6, 7, 2 << 20)
    A(f"s_cmp_eq_u32 s{sISV}, 0")
    A(f"s_cselect_b32 s{S_W}, s8, s10"); A(f"s_cselect_b32 s{S_W+1}, s9, s11")
    A(f"s_mov_b32 s{S_W+2}, {4<<20}"); A(f"s_mov_b32 s{S_W+3}, 0x00020000")
    srd(A, S_X, 4, 5, 2 << 20)
    srd(A, S_XN, 12, 13, 2 << 20)
    A(f"s_add_u32 s{S_KV}, s12, {WS_KV}"); A(f"s_addc_u32 s{S_KV+1}, s13, 0")
    A(f"s_mov_b32 s{S_KV+2}, {32<<20}"); A(f"s_mov_b32 s{S_KV+3}, 0x00020000")
    vm = VM()
    t0, t1, t2, t3 = TMP+8, TMP+9, TMP+10, TMP+11
    WS0 = 64 * 1024
    def wslot(c): return [0,1,2,3,4,5,0,1,2,3,4,5,2,3,4,5][c]
    A(f"v_lshlrev_b32 v{vSt0}, 4, v{vLane}")
    A(f"v_lshrrev_b32 v{t0}, 4, v{vLane}")
    A(f"v_and_b32 v{t1}, 15, v{vLane}")
    A(f"s_lshl_b32 s{sTMP}, s{sW}, 8")
    for j in range(4):
        A(f"v_add_u32 v{t2}, {4*j}, v{t0}")
        A(f"v_xor_b32 v{t3}, v{t2}, v{t1}")
        A(f"v_lshlrev_b32 v{t3}, 4, v{t3}")
        A(f"v_mul_u32_u24 v{t2}, 1024, v{t2}")
        A(f"v_add3_u32 v{vCoff+j}, v{t2}, v{t3}, s{sTMP}")
        if j: A(f"v_subrev_u32 v{vCoff+j}, {j*1024}, v{vCoff+j}")
    A(f"s_lshl_b32 s{sCROW}, s{sST}, 18")
    A(f"s_lshl_b32 s{sM0C}, s{sW}, 13")
    A(f"s_lshl_b32 s{sM0W}, s{sW}, 12"); A(f"s_add_u32 s{sM0W}, s{sM0W}, {WS0}")

    def c_dma(s, m):
        buf = (s % 4) * 32768
        r = []
        if m % 4 == 0:
            mq = m // 4
            r.append((f"s_add_u32 m0, s{sM0C}, {buf + mq*4096}", SAL))
            r.append((f"s_add_u32 s49, s{sCROW}, {(s*32 + 16*mq)*1024}", SAL))
        j = m % 4
        r.append((f"buffer_load_dwordx4 v{vCoff+j}, s[{S_C}:{S_C+3}], s49 offen offset:{j*1024} lds", MEM))
        return r
    def w_dma(c, i):
        r = []
        if i == 0:
            r.append((f"s_add_u32 m0, s{sM0W}, {wslot(c)*16384}", SAL))
            r.append((f"s_mov_b32 s50, {c*262144}", SAL))
        r.append((f"buffer_load_dwordx4 v{vWoff+i}, s[{S_W}:{S_W+3}], s50 offen offset:{i*1024} lds", MEM))
        return r
    def emit_group(fn, n, tag):
        for m in range(n):
            for ins, k in fn(m): A(ins)
            vm.issue(tag)
    A(f"v_lshrrev_b32 v{t0}, 5, v{vLane}")
    A(f"v_and_b32 v{t1}, 31, v{vLane}")
    A(f"s_and_b32 s{sTMP}, s{sW}, 1"); A(f"s_lshl_b32 s{sTMP}, s{sTMP}, 2")
    A(f"s_lshl_b32 s{sTMP2}, s{sW}, 3")
    A(f"v_lshrrev_b32 v{TMP+12}, 1, v{t1}")
    A(f"v_and_b32 v{TMP+13}, 1, v{t1}"); A(f"v_lshlrev_b32 v{TMP+13}, 4, v{TMP+13}")
    A(f"s_lshl_b32 s51, s{sNT}, 9")
    A(f"v_add_u32 v{TMP+13}, s51, v{TMP+13}")
    for i in range(4):
        A(f"v_add_u32 v{t2}, {2*i}, v{t0}")
        A(f"v_and_or_b32 v{t3}, v{t2}, 3, s{sTMP}")
        A(f"v_xor_b32 v{t3}, v{t3}, v{TMP+12}")
        A(f"v_lshl_add_u32 v{t3}, v{t3}, 5, v{TMP+13}")
        A(f"v_add_u32 v{t2}, s{sTMP2}, v{t2}")
        A(f"v_lshl_add_u32 v{vWoff+i}, v{t2}, 13, v{t3}")
        if i: A(f"v_subrev_u32 v{vWoff+i}, {i*1024}, v{vWoff+i}")
    emit_group(lambda m: w_dma(0, m), 4, "w0")
    emit_group(lambda m: c_dma(0, m), 8, "c0")
    emit_group(lambda m: c_dma(1, m), 8, "c1")
    emit_group(lambda m: w_dma(1, m), 4, "w1")
    emit_group(lambda m: w_dma(2, m), 4, "w2")
    A(f"s_lshl_b32 s{sTMP}, s2, 3"); A(f"s_lshl_b32 s{sTMP2}, s{sW}, 1"); A(f"s_add_u32 s48, s{sTMP}, s{sTMP2}")
    A(f"s_lshl_b32 s47, s48, 10")
    if not FINE: P.stamp(A)
    A(f"v_lshrrev_b32 v{t0}, 4, v{vLane}")
    A(f"v_and_b32 v{t1}, 15, v{vLane}")
    A(f"v_lshlrev_b32 v{t3}, 8, v{t1}")
    for b in range(4):
        A(f"v_add_u32 v{t2}, {4*b}, v{t0}")
        A(f"v_xor_b32 v{t2}, v{t2}, v{t1}")
        A(f"v_lshl_add_u32 v{vCr0+b}, v{t2}, 4, v{t3}")
        A(f"v_add_u32 v{vCr1+b}, 0x10000, v{vCr0+b}")
    A(f"v_lshrrev_b32 v{t2}, 2, v{t1}")
    A(f"v_and_b32 v{t3}, 1, v{t0}"); A(f"v_lshl_or_b32 v{t3}, v{t3}, 2, v{t2}")
    A(f"v_lshl_add_u32 v{TMP+12}, v{t0}, 3, v{t2}")
    A(f"v_lshlrev_b32 v{TMP+12}, 9, v{TMP+12}")
    A(f"v_and_b32 v{TMP+13}, 3, v{t1}")
    A(f"v_lshl_add_u32 v{TMP+12}, v{TMP+13}, 3, v{TMP+12}")
    A(f"v_add_u32 v{TMP+12}, {WS0}, v{TMP+12}")
    A(f"s_lshl_b32 s{sTMP}, s{sW}, 2")
    for t in range(4):
        A(f"s_add_u32 s{sTMP2}, s{sTMP}, {t}")
        A(f"v_xor_b32 v{TMP+13}, s{sTMP2}, v{t3}")
        A(f"v_lshl_add_u32 v{vTr+t}, v{TMP+13}, 5, v{TMP+12}")
        A(f"v_add_u32 v{vTr2+t}, 0x10000, v{vTr+t}")
    A(f"s_lshr_b32 s{sTMP}, s{sW}, 1"); A(f"s_lshl_b32 s{sTMP2}, s{sNT}, 1"); A(f"s_add_u32 s{sTMP}, s{sTMP}, s{sTMP2}")
    A(f"s_lshl_b32 s{sTMP}, s{sTMP}, 6"); A(f"s_lshl_b32 s{sTMP2}, s{sST}, 3"); A(f"s_add_u32 s{sTMP}, s{sTMP}, s{sTMP2}")
    A(f"s_lshl_b32 s{sSTB}, s{sTMP}, 14")
    A(f"s_and_b32 s{sTMP}, s{sW}, 1")
    A(f"s_add_u32 s{sTMP2}, s{sISV}, 12"); A(f"s_lshl_b32 s{sTMP}, s{sTMP}, s{sTMP2}")
    A(f"s_add_u32 s{sSTB}, s{sSTB}, s{sTMP}")
    A(f"s_mov_b32 s{sTMP2}, 4096"); A(f"s_cmp_eq_u32 s{sISV}, 0"); A(f"s_cselect_b32 s{sTMP}, 0x2000, s{sTMP2}")
    A(f"v_add_u32 v{vSt1}, s{sTMP}, v{vSt0}")

    def ln_job(A, vm):
        A(vm.wait("x"))
        X = TMP + 16
        for r in range(2):
            for i in range(4):
                A(f"v_lshlrev_b32 v{X+8*r+2*i}, 16, v{TMP+4*r+i}")
                A(f"v_and_b32 v{X+8*r+2*i+1}, 0xffff0000, v{TMP+4*r+i}")
        for r in range(2):
            m = TMP + 8 + r
            x = X + 8*r
            A(f"v_add_f32 v{m}, v{x}, v{x+1}")
            for i in range(2, 8): A(f"v_add_f32 v{m}, v{m}, v{x+i}")
            allreduce64(A, m, TMP+10)
            A(f"v_mul_f32 v{m}, {f2u(1.0/512):#x}, v{m}")
            for i in range(8): A(f"v_sub_f32 v{x+i}, v{x+i}, v{m}")
            A(f"v_mul_f32 v{m}, v{x}, v{x}")
            for i in range(1, 8): A(f"v_fmac_f32 v{m}, v{x+i}, v{x+i}")
            allreduce64(A, m, TMP+10)
            A(f"v_mov_b32 v{TMP+11}, {f2u(1e-5):#x}")
            A(f"v_fmac_f32 v{TMP+11}, {f2u(1.0/512):#x}, v{m}")
            A(f"v_rsq_f32 v{m}, v{TMP+11}"); A("s_nop 0")
            A(f"v_mul_f32 v{m}, {f2u(QSCALE):#x}, v{m}")
            for i in range(8): A(f"v_mul_f32 v{x+i}, v{x+i}, v{m}")
            for i in range(4): A(f"v_cvt_pk_bf16_f32 v{TMP+4*r+i}, v{x+2*i}, v{x+2*i+1}")
        u0, u1 = TMP+12, TMP+13
        A(f"v_lshrrev_b32 v{u0}, 2, v{vLane}"); A(f"v_lshlrev_b32 v{u0}, 10, v{u0}")
        A(f"v_and_b32 v{u1}, 3, v{vLane}"); A(f"v_lshl_add_u32 v{u0}, v{u1}, 8, v{u0}")
        A("s_lshr_b32 s51, s48, 4"); A("s_lshl_b32 s51, s51, 14")
        A("s_and_b32 s52, s48, 15"); A("s_lshl_b32 s52, s52, 4"); A("s_add_u32 s51, s51, s52")
        A(f"buffer_store_dwordx4 v[{TMP}:{TMP+3}], v{u0}, s[{S_XN}:{S_XN+3}], s51 offen"); vm.issue("xs")
        A(f"buffer_store_dwordx4 v[{TMP+4}:{TMP+7}], v{u0}, s[{S_XN}:{S_XN+3}], s51 offen offset:16"); vm.issue("xs")

    A(f"s_cmp_eq_u32 s{sISV}, 0"); A("s_cbranch_scc0 K1_V")

    def body(isV, vm):
        P.n = 1 if FINE else 3
        def mf(s_acc, rt, t, ks, cf, first):
            d = vr(acc(s_acc, rt, t), 4); c = "0" if first else d
            w = ar(wfrag(ks, t), 4); x = vr(cf, 4)
            return mfma16(d, x, w, c) if isV else mfma16(d, w, x, c)
        def c_read(dst, s, ks, rt):
            b = ks % 4; kb = ks // 4; buf = s % 4
            base = (vCr0 if buf < 2 else vCr1) + b
            off = (buf % 2)*32768 + kb*8192 + rt*4096
            return f"ds_read_b128 v[{dst}:{dst+3}], v{base} offset:{off}"
        def tr_read(c, t, j):
            d = wfrag(c, t) + 2*j
            sl = wslot(c)
            return f"ds_read_b64_tr_b16 a[{d}:{d+1}], v{(vTr if sl < 4 else vTr2)+t} offset:{(sl%4)*16384 + j*2048}"
        A(vm.wait("c1")); A("s_barrier")
        if not FINE: P.stamp(A)
        for t in range(4):
            for j in range(2): A(tr_read(0, t, j))
        for i in range(4): A(c_read(CF + 4*i, i//2, 0, i % 2))
        A("s_waitcnt lgkmcnt(0)")
        for c in range(16):
            cfs = CF + 16*(c % 2); cfn = CF + 16*((c+1) % 2)
            ms = [mf(i//2, i % 2, t, c, cfs + 4*i, c == 0) for i in range(4) for t in range(4)]
            W = Weave(ms)
            pre = []
            if c < 15:
                tagw = f"w{c+1}"
                pre.append(vm.wait(tagw))
                pre.append("s_barrier")
            A(pre)
            if FINE and c in (0, 3, 6, 9, 12, 13): P.stamp(A)
            g = 0
            if c < 15:
                for t in range(4):
                    for j in range(2): g = W.put(tr_read(c+1, t, j), g, 1, MEM)
                for i in range(4): g = W.put(c_read(cfn + 4*i, i//2, c+1, i % 2), g, 1, MEM)
            sched = {0:[3,4],1:[5,6],2:[7,8],3:[9],4:[10],5:[11],7:['c2'],8:[12],9:[13],10:[14],11:[15]}
            g += 1
            for item in sched.get(c, []):
                n = 8 if item == 'c2' else 4
                for i in range(n):
                    lst = c_dma(2, i) if item == 'c2' else w_dma(item, i)
                    for ins, k in lst:
                        if k == SAL: g = W.put(ins, g, 1, SAL)
                        else: g = W.put(ins, g+1 if len(lst) > 1 else g, 2, MEM); g += 1
                    vm.issue("c2" if item == 'c2' else f"w{item}")
            if c == 4:
                g = W.put(f"buffer_load_dwordx4 v[{TMP}:{TMP+3}], v{vSt0}, s[{S_X}:{S_X+3}], s47 offen", g, 2, MEM); vm.issue("x")
                g = W.put(f"buffer_load_dwordx4 v[{TMP+4}:{TMP+7}], v{vSt0}, s[{S_X}:{S_X+3}], s47 offen offset:1024", g+1, 2, MEM); vm.issue("x")
            W.emit(A)
            if c == 12: ln_job(A, vm)
            A("s_waitcnt lgkmcnt(0)")
        A(vm.wait("c2"))
        A("s_barrier")
        P.stamp(A)
        steps = [(s, ks) for s in range(2, 8) for ks in range(16)]
        def cfs(n): return CF + 8*(n % 3)
        for n in (0, 1):
            s, ks = steps[n]
            for rt in range(2): A(c_read(cfs(n) + 4*rt, s, ks, rt))
        ms = []
        for n, (s, ks) in enumerate(steps):
            for rt in range(2):
                for t in range(4):
                    ms.append(mf(s % 3, rt, t, ks, cfs(n) + 4*rt, ks == 0))
        W = Weave(ms)
        A("s_waitcnt lgkmcnt(2)")
        events = []
        vitems = []
        for n, (s, ks) in enumerate(steps):
            if n + 2 < len(steps):
                s2, k2 = steps[n+2]
                W.at(c_read(cfs(n+2), s2, k2, 0), 8*n + 0, 1, MEM)
                W.at(c_read(cfs(n+2) + 4, s2, k2, 1), 8*n + 0, 1, MEM)
            if n + 1 < len(steps):
                W.at("s_waitcnt lgkmcnt(2)" if n + 2 < len(steps) else "s_waitcnt lgkmcnt(0)", 8*n + 7, 1, SAL)
        def drain(sacc, s_idx, g0, pk, step):
            W.put(f"s_add_u32 s{53+(s_idx%2)}, s{sSTB}, {s_idx*16384}", g0, 1, SAL)
            for q in range(4):
                g = g0 + 1 + q*step
                if not isV:
                    rt, j = q//2, q % 2
                    srcs = [acc(sacc, rt, 2*j), acc(sacc, rt, 2*j)+2, acc(sacc, rt, 2*j+1), acc(sacc, rt, 2*j+1)+2]
                    vo, io = (vSt0 if rt == 0 else vSt1), j*1024
                else:
                    t = q
                    srcs = [acc(sacc, 0, t), acc(sacc, 0, t)+2, acc(sacc, 1, t), acc(sacc, 1, t)+2]
                    vo, io = (vSt0 if t < 2 else vSt1), 2048 + (t % 2)*1024
                p = pk + 4*q
                for i, sreg in enumerate(srcs):
                    g = W.put(f"v_cvt_pk_bf16_f32 v{p+i}, v{sreg}, v{sreg+1}", g, 1, VAL)
                g = W.put(f"buffer_store_dwordx4 v[{p}:{p+3}], v{vo}, s[{S_KV}:{S_KV+3}], s{53+(s_idx%2)} offen offset:{io}{STFLAG}", g+1, 2, MEM)
                vitems.append((g, W.seq, f"st{s_idx}"))
        lastdma = [-1]
        def dma_sub(s_idx, g0, step):
            for m in range(8):
                g = max(g0 + m*step, lastdma[0] + 1)
                lst = c_dma(s_idx, m)
                for ins, k in lst:
                    if k == SAL: g = W.put(ins, g, 1, SAL)
                    else:
                        g = W.put(ins, g+1 if len(lst) > 1 else g, 2, MEM)
                        vitems.append((g, W.seq, f"c{s_idx}"))
                        lastdma[0] = g
        for s in range(2, 8):
            g0 = (s-2)*128
            if s == 2:
                dma_sub(3, g0 + 1, 6); dma_sub(4, g0 + 50, 6)
                drain(0, 0, g0 + 9, PK, 11); drain(1, 1, g0 + 54, PK + 16, 11)
            else:
                if s + 2 < 8: dma_sub(s+2, g0 + 1, 12)
                drain((s-1) % 3, s-1, g0 + 9, PK + 16*(s % 2), 22)
        assert max(g for g, _, _ in vitems if g % 128 < 110 or True) < 6*128
        vitems.sort()
        vi = 0
        for s in range(2, 7):
            gb = (s-2)*128 + 13*8 + 2
            while vi < len(vitems) and vitems[vi][0] <= gb:
                vm.issue(vitems[vi][2]); vi += 1
            assert not any(g in (gb+1, gb+2) for g, _, _ in vitems)
            W.at(vm.wait(f"c{s+1}"), gb + 1, 1, SAL)
            W.at("s_barrier", gb + 2, 1, SAL)
        W.emit(A)
        print("K1 weave overflow:", W.over, file=__import__("sys").stderr)
        A("s_nop 7"); A("s_nop 1")
        if not FINE: P.stamp(A)
        sacc = 7 % 3
        A(f"s_add_u32 s53, s{sSTB}, {7*16384}")
        for q in range(4):
            if not isV:
                rt, j = q//2, q % 2
                srcs = [acc(sacc, rt, 2*j), acc(sacc, rt, 2*j)+2, acc(sacc, rt, 2*j+1), acc(sacc, rt, 2*j+1)+2]
                vo, io = (vSt0 if rt == 0 else vSt1), j*1024
            else:
                t = q
                srcs = [acc(sacc, 0, t), acc(sacc, 0, t)+2, acc(sacc, 1, t), acc(sacc, 1, t)+2]
                vo, io = (vSt0 if t < 2 else vSt1), 2048 + (t % 2)*1024
            p = PK + 4*q
            for i, sreg in enumerate(srcs): A(f"v_cvt_pk_bf16_f32 v{p+i}, v{sreg}, v{sreg+1}")
            A(f"buffer_store_dwordx4 v[{p}:{p+3}], v{vo}, s[{S_KV}:{S_KV+3}], s53 offen offset:{io}{STFLAG}")
        if asmlib.PROF:
            A("s_waitcnt vmcnt(0)"); (None if FINE else P.stamp(A)); A("s_waitcnt lgkmcnt(0)"); P.flush(A, 28)
        A("s_endpgm")
    import copy
    vmK = copy.deepcopy(vm); vmV = copy.deepcopy(vm)
    body(False, vmK)
    A("K1_V:")
    body(True, vmV)
    A("K1_END:"); A("s_endpgm")
    return name, 512, 100, 256
```

```python
from asmlib import *
import asmlib, struct, sys
def f2u(f): return struct.unpack("<I", struct.pack("<f", f))[0]
NEGBIG = f2u(-1e30)
STFLAG = " sc0 sc1"

def O(qt, dt): return (qt*8 + dt)*4
def Lr(qt): return 128 + 4*qt
def KF(kf): return 144 + 4*kf
def VF(vf): return 176 + 4*vf
ONES = 208
def S(st, t, qt): return 16 + st*32 + (t*4 + qt)*4
def Pk(st, qt): return 80 + st*16 + qt*4
def C(t, qt): return 112 + (t*4 + qt)*4
def Q(qt, ks): return 144 + (qt*4 + ks)*4
NEGM = 208
ZV = 212
vL16, vKa, vKb, vDma = 1, 2, 3, 4
T0 = 216
S_KV, S_XN, S_WQ, S_CTX = 16, 20, 24, 28
sW, sI, sHEAD, sHc, sHo, sKVo, sCNT, sT, sT2 = 36, 37, 38, 39, 40, 41, 42, 43, 44
sRTB, sRTA = 45, 46
sU = 47
sFAIL = 48
BQ, AQ = (0, 1), (2, 3)

def koff(kf): return (kf >> 1)*4096 + (kf & 1)*1024
def voff(vf): return (vf >> 1)*4096 + 2048 + (vf & 1)*1024
def lds_ref(x):
    if 0 <= x <= 3: return vKa, x*16384
    if 4 <= x <= 7: return vKb, (x-4)*16384
    if x < 0: return vKb, (x+4)*16384
    return vKa, (x-8)*16384

def mask_block(A, qts, tag):
    for qt in qts:
        for t in range(2):
            for r in range(4):
                A(f"v_cmp_le_i32 s[{60+2*r}:{61+2*r}], {16*t + r}, v{ZV+qt}")
            A("s_nop 0")
            for r in range(4):
                A(f"v_cndmask_b32 v{C(t,qt)+r}, v{T0}, v{NEGM+qt}, s[{60+2*r}:{61+2*r}]")
        A(f"v_subrev_u32 v{ZV+qt}, 32, v{ZV+qt}")

def build_slot(s, qk, sm, pv, dma, kread, first_pv=False, vmw=12, extra=None, toggles=False):
    n_par = (s + 1) & 1
    ms = []
    qk_last = {}
    for t in range(2):
        for ks in range(4):
            for qt in qk:
                d = vr(S(1 - n_par, t, qt), 4)
                c = vr(C(t, qt), 4) if ks == 0 else d
                ms.append(mfma16(d, ar(KF(t*4+ks), 4), vr(Q(qt, ks), 4), c))
            qk_last[t*4+ks] = len(ms) - 1
    nqk = len(ms)
    pv_first = {}
    for qt in pv:
        c = "0" if first_pv else ar(Lr(qt), 4)
        ms.append(mfma16(ar(Lr(qt), 4), ar(ONES, 4), vr(Pk(1 - n_par, qt), 4), c))
    for dt in range(8):
        pv_first[dt] = len(ms)
        for qt in pv:
            c = "0" if first_pv else ar(O(qt, dt), 4)
            ms.append(mfma16(ar(O(qt, dt), 4), ar(VF(dt), 4), vr(Pk(1 - n_par, qt), 4), c))
    W = Weave(ms)
    N = len(ms)
    vg = []
    if pv:
        b, off = lds_ref(s - 2)
        g = 1
        for vf in range(8):
            g = W.put(f"ds_read_b128 {ar(VF(vf),4)}, v{b} offset:{off + voff(vf)}", g, 1, MEM)
            vg.append(g)
            if vf % 2 == 1: g += 2 if N > 40 else 1
    exps = []
    for qt in sm:
        for t in range(2):
            for r in range(4): exps.append(S(n_par, t, qt) + r)
    ne = len(exps)
    eg = []
    g = 0
    for e, reg in enumerate(exps):
        tgt = (e * max(N - 2, 1)) // max(ne, 1)
        g = W.put(f"v_exp_f32 v{reg}, v{reg}", max(g, tgt), 2, VAL)
        eg.append(g); g += 1
    k = 0
    for qi, qt in enumerate(sm):
        for h in range(4):
            t, r = h // 2, (h % 2)*2
            e = qi*8 + t*4 + r
            after = eg[e+1] + 1
            W.put(f"v_cvt_pk_bf16_f32 v{Pk(n_par, qt)+h}, v{S(n_par,t,qt)+r}, v{S(n_par,t,qt)+r+1}", after, 1, VAL)
    if pv:
        W.at("s_waitcnt lgkmcnt(0)", max(pv_first[0] - 1, 0), 1, SAL)
    gb = None
    if vmw is not None:
        g = W.put(f"s_waitcnt vmcnt({vmw})", min(N//4, 17), 1, SAL)
        gb = W.put("s_barrier", g + 2, 1, SAL)
    if dma:
        x = s + 5
        hs = sHo if 4 <= x <= 7 else sHc
        g = W.put(f"s_add_u32 m0, s{hs}, {(x % 4)*16384}", gb + 1, 1, SAL)
        g = W.put(f"s_add_u32 s{sKVo}, s{sKVo}, 16384", g, 1, SAL)
        step = max(2, (N - g - 6)//5)
        for i in range(4):
            g = W.put(f"buffer_load_dwordx4 v{vDma}, s[{S_KV}:{S_KV+3}], s{sKVo} offen offset:{i*1024} lds", g + (1 if i == 0 else step), 2, MEM)
    if kread:
        b, off = lds_ref(s + 1)
        lo = max(gb + 1 if gb is not None else 0, (pv_first[0] if pv else 0))
        g = lo
        kmax = 0
        for kf in range(8):
            e = max(g, qk_last.get(kf, -1) + 1)
            ins = f"ds_read_b128 {ar(KF(kf),4)}, v{b} offset:{off + koff(kf)}"
            if (not pv and e > N - 5) or W.tail: W.tail.append(ins)
            else:
                g = W.put(ins, min(e, N-4), 1, MEM, last=N-4); kmax = max(kmax, g)
        if W.tail: W.tail.append("s_waitcnt lgkmcnt(0)")
        else: W.at("s_waitcnt lgkmcnt(0)", N - 1, 1, SAL)
    if toggles:
        tg = [(f"v_xor_b32 v{vKa}, 0x10000, v{vKa}", VAL), (f"v_xor_b32 v{vKb}, 0x10000, v{vKb}", VAL),
              (f"s_xor_b32 s{sHc}, s{sHc}, 0x10000", SAL), (f"s_xor_b32 s{sHo}, s{sHo}, 0x10000", SAL)]
        for ins, k in tg:
            if W.tail: W.tail.append(ins)
            else: W.put(ins, N - 3, 1, k)
    return W

def emit_group(A, name, qks, sms, pvs, dmas, kreads, masks=None, first_pv=None, vmws=None, loop=None):
    tot_over = 0
    for s in range(4):
        if qks[s] is None and sms[s] is None and pvs[s] is None: continue
        if masks and masks[s]:
            for (qts, cond) in masks[s]:
                if cond is None: mask_block(A, qts, name)
                else:
                    lab = f"{name}_NM{s}_{qts[0]}"
                    A(f"s_cmp_eq_u32 s{sI}, {cond}"); A(f"s_cbranch_scc0 {lab}")
                    mask_block(A, qts, name)
                    A(f"{lab}:")
            A("s_nop 1")
        W = build_slot(s, qks[s] or (), sms[s] or (), pvs[s] or (), dmas[s], kreads[s],
                       first_pv=bool(first_pv and first_pv[s]), vmw=(vmws[s] if vmws else 12), toggles=(s == 3))
        W.emit(A); tot_over += W.over
    print(f"K2 group {name}: overflow {tot_over}", file=sys.stderr)

def epilogue(A, qts, srt):
    A("s_nop 7")
    for qi, qt in enumerate(qts):
        inv = T0 + 1 + qi
        A(f"v_accvgpr_read_b32 v{inv}, a{Lr(qt)}")
        A("s_nop 0")
        A(f"v_cmp_nle_f32 vcc, v{inv}, v{T0+4}")
        A("s_nop 3")
        A(f"s_or_b64 s[{sFAIL}:{sFAIL+1}], s[{sFAIL}:{sFAIL+1}], vcc")
        A(f"v_rcp_f32 v{inv}, v{inv}")
    for qi, qt in enumerate(qts):
        inv = T0 + 1 + qi
        A(f"s_add_u32 s{sT}, s{srt}, {qi}"); A(f"s_lshl_b32 s{sT}, s{sT}, 17")
        A(f"s_lshl_b32 s{sT2}, s{sHEAD}, 12"); A(f"s_add_u32 s{sT}, s{sT}, s{sT2}")
        for ks in range(4):
            tb = T0 + 8 + (ks % 2)*12
            for h in range(2):
                for r in range(4):
                    A(f"v_accvgpr_read_b32 v{tb+4*h+r}, a{O(qt, 2*ks+h)+r}")
            for j in range(8): A(f"v_mul_f32 v{tb+j}, v{tb+j}, v{inv}")
            for j in range(4): A(f"v_cvt_pk_bf16_f32 v{tb+8+j}, v{tb+2*j}, v{tb+2*j+1}")
            A(f"buffer_store_dwordx4 v[{tb+8}:{tb+11}], v{vL16}, s[{S_CTX}:{S_CTX+3}], s{sT} offen offset:{ks*1024}{STFLAG}")

def gen_k2(A):
    name = "k2_kernel"
    kernel_head(A, name)
    P = Prof(1)
    A("s_cmp_ge_u32 s2, 256"); A("s_cbranch_scc1 K2_END")
    P.stamp(A)
    A("s_load_dwordx2 s[4:5], s[0:1], 16"); A("s_load_dwordx2 s[12:13], s[0:1], 96")
    A("v_and_b32 v5, 63, v0"); A(f"v_lshlrev_b32 v{vL16}, 4, v5")
    A("v_lshrrev_b32 v6, 6, v0"); A("s_nop 0"); A(f"v_readfirstlane_b32 s{sW}, v6")
    A(f"s_lshr_b32 s{sI}, s2, 5")
    A(f"s_and_b32 s{sT}, s2, 7"); A(f"s_lshl_b32 s{sT}, s{sT}, 2"); A(f"s_lshr_b32 s{sT2}, s2, 3"); A(f"s_and_b32 s{sT2}, s{sT2}, 3")
    A(f"s_add_u32 s{sHEAD}, s{sT}, s{sT2}")
    A(f"s_lshl_b32 s{sT}, s{sW}, 1")
    A(f"s_lshl_b32 s{sRTB}, s{sI}, 3"); A(f"s_add_u32 s{sRTB}, s{sRTB}, s{sT}")
    A(f"s_sub_u32 s{sRTA}, 15, s{sI}"); A(f"s_lshl_b32 s{sRTA}, s{sRTA}, 3"); A(f"s_add_u32 s{sRTA}, s{sRTA}, s{sT}")
    A("s_waitcnt lgkmcnt(0)")
    srd(A, S_WQ, 4, 5, 4 << 20)
    srd(A, S_XN, 12, 13, 2 << 20)
    A(f"s_add_u32 s{S_KV}, s12, {WS_KV}"); A(f"s_addc_u32 s{S_KV+1}, s13, 0"); A(f"s_mov_b32 s{S_KV+2}, {32<<20}"); A(f"s_mov_b32 s{S_KV+3}, 0x00020000")
    A(f"s_add_u32 s{S_CTX}, s12, {WS_CTX}"); A(f"s_addc_u32 s{S_CTX+1}, s13, 0"); A(f"s_mov_b32 s{S_CTX+2}, {16<<20}"); A(f"s_mov_b32 s{S_CTX+3}, 0x00020000")
    vm = VM()
    vWq = 8
    A("v_lshrrev_b32 v6, 4, v5"); A("v_and_b32 v7, 15, v5")
    A(f"v_lshrrev_b32 v{T0}, 1, v7")
    A(f"v_and_b32 v{T0+1}, 1, v7"); A(f"v_lshlrev_b32 v{T0+1}, 4, v{T0+1}")
    A(f"s_lshl_b32 s{sT}, s{sHEAD}, 8"); A(f"s_lshl_b32 s{sT2}, s{sW}, 18"); A(f"s_add_u32 s{sT}, s{sT}, s{sT2}")
    A(f"v_add_u32 v{T0+1}, s{sT}, v{T0+1}")
    A(f"v_lshl_add_u32 v{T0+1}, v6, 13, v{T0+1}")
    for j in range(4):
        A(f"v_or_b32 v{T0+2}, {((j >> 1) & 1) << 2}, v6")
        A(f"v_xor_b32 v{T0+2}, v{T0+2}, v{T0}")
        A(f"v_lshl_add_u32 v{vWq+j}, v{T0+2}, 5, v{T0+1}")
        if j: A(f"v_add_u32 v{vWq+j}, {j*32768 - j*1024}, v{vWq+j}")
    sM0 = 50
    A(f"s_lshl_b32 s{sM0}, s{sW}, 13")
    def wq_dma(c):
        r = []
        for m in range(8):
            if m % 4 == 0:
                mq = m // 4
                r.append((f"s_add_u32 m0, s{sM0}, {c*32768 + mq*4096}", SAL, None))
                r.append((f"s_mov_b32 s51, {(c*128 + 16*mq)*8192}", SAL, None))
            j = m % 4
            r.append((f"buffer_load_dwordx4 v{vWq+j}, s[{S_WQ}:{S_WQ+3}], s51 offen offset:{j*1024} lds", MEM, f"wq{c}"))
        return r
    def xn_reg(c, qt, ksl): return (c % 3)*64 + (qt*4 + ksl)*4
    def xn_load(c):
        r = []
        for qt in range(4):
            srt = sRTB if qt < 2 else sRTA
            r.append((f"s_add_u32 s52, s{srt}, {qt % 2}", SAL, None)); r.append(("s_lshl_b32 s52, s52, 14", SAL, None)); r.append((f"s_add_u32 s52, s52, {c*4096}", SAL, None))
            for ksl in range(4):
                r.append((f"buffer_load_dwordx4 {ar(xn_reg(c, qt, ksl), 4)}, v{vL16}, s[{S_XN}:{S_XN+3}], s52 offen offset:{ksl*1024}", MEM, f"xn{c}"))
        return r
    def plain(lst):
        for ins, k, tag in lst:
            A(ins)
            if tag: vm.issue(tag)
    def woven(W, lst, g, step=2):
        for ins, k, tag in lst:
            if k == SAL: g = W.put(ins, g, 1, SAL)
            else:
                g = W.put(ins, g + 1, 2, MEM); vm.issue(tag); g += step - 1
        return g
    plain(wq_dma(0)); plain(xn_load(0)); plain(wq_dma(1)); plain(xn_load(1))
    vTr = 224
    A(f"v_lshrrev_b32 v{T0}, 2, v7")
    A(f"v_and_b32 v{T0+1}, 1, v6"); A(f"v_lshl_or_b32 v{T0+1}, v{T0+1}, 2, v{T0}")
    A(f"v_lshl_add_u32 v{T0+2}, v6, 3, v{T0}"); A(f"v_lshlrev_b32 v{T0+2}, 8, v{T0+2}")
    A(f"v_and_b32 v{T0+3}, 3, v7"); A(f"v_lshl_add_u32 v{T0+2}, v{T0+3}, 3, v{T0+2}")
    for dt in range(8):
        A(f"v_xor_b32 v{T0+3}, {dt}, v{T0+1}")
        A(f"v_lshl_add_u32 v{vTr+dt}, v{T0+3}, 5, v{T0+2}")
    A(f"s_lshl_b32 s{sT}, s{sW}, 12")
    A(f"v_add_u32 v{vDma}, s{sT}, v{vL16}")
    A(f"s_mov_b32 s{sHc}, s{sT}"); A(f"s_add_u32 s{sHo}, s{sT}, 0x10000")
    A(f"v_mov_b32 v{vKa}, v{vL16}"); A(f"v_add_u32 v{vKb}, 0x10000, v{vL16}")
    A(f"s_lshl_b32 s{sKVo}, s{sHEAD}, 20")
    A(f"s_mov_b64 s[{sFAIL}:{sFAIL+1}], 0")
    def kv_dma(u):
        r = [(f"s_add_u32 m0, s{sHc}, {u*16384}", SAL, None), (f"s_add_u32 s53, s{sKVo}, {u*16384}", SAL, None)]
        for i in range(4):
            r.append((f"buffer_load_dwordx4 v{vDma}, s[{S_KV}:{S_KV+3}], s53 offen offset:{i*1024} lds", MEM, f"u{u}"))
        return r
    QA = 16
    def qa(dt, qt): return QA + (dt*4 + qt)*4
    def wf(par, dt): return 192 + par*32 + dt*4
    def tr(c, ksl, dt, j, par):
        d = wf(par, dt) + 2*j
        return f"ds_read_b64_tr_b16 a[{d}:{d+1}], v{vTr+dt} offset:{(c % 2)*32768 + ksl*8192 + j*1024}"
    P.stamp(A)
    step = 0
    for c in range(4):
        A(f"s_waitcnt vmcnt({min(63, vm.count_after(f'xn{c}'), vm.count_after(f'wq{c}'))})")
        A("s_barrier")
        if c == 2:
            for dt in range(8): A(f"v_add_u32 v{vTr+dt}, 0x10000, v{vTr+dt}")
            A("s_nop 1")
        for dt in range(8):
            for j in range(2): A(tr(c, 0, dt, j, step % 2))
        A("s_waitcnt lgkmcnt(0)")
        pend = {0: wq_dma(2) + xn_load(2) + wq_dma(3), 1: kv_dma(0) + kv_dma(1) + xn_load(3), 2: kv_dma(2) + kv_dma(3), 3: kv_dma(4) + kv_dma(5)}[c]
        groups = [[], [], [], []]
        nmem = sum(1 for x in pend if x[1] == MEM); per = -(-nmem // 4); cnt = 0
        cur = []
        for it in pend:
            cur.append(it)
            if it[1] == MEM:
                groups[min(cnt // per, 3)] += cur; cur = []; cnt += 1
        for ksl in range(4):
            par = step % 2
            ms = [mfma16(vr(qa(dt, qt), 4), ar(wf(par, dt), 4), ar(xn_reg(c, qt, ksl), 4), "0" if step == 0 else vr(qa(dt, qt), 4))
                  for dt in range(8) for qt in range(4)]
            W = Weave(ms)
            g = 0
            if ksl < 3:
                for dt in range(8):
                    for j in range(2): g = W.put(tr(c, ksl+1, dt, j, 1 - par), g, 1, MEM)
                W.at("s_waitcnt lgkmcnt(0)", 31, 1, SAL)
            woven(W, groups[ksl], g + 1, 2)
            assert W.over == 0
            W.emit(A)
            step += 1
    P.stamp(A)
    A("s_nop 7")
    for qt in range(4):
        for ks in range(4):
            a0, a1 = qa(2*ks, qt), qa(2*ks+1, qt)
            A(f"v_cvt_pk_bf16_f32 v{Q(qt,ks)}, v{a0}, v{a0+1}"); A(f"v_cvt_pk_bf16_f32 v{Q(qt,ks)+1}, v{a0+2}, v{a0+3}")
            A(f"v_cvt_pk_bf16_f32 v{Q(qt,ks)+2}, v{a1}, v{a1+1}"); A(f"v_cvt_pk_bf16_f32 v{Q(qt,ks)+3}, v{a1+2}, v{a1+3}")
    A(f"v_mov_b32 v{T0}, {NEGBIG:#x}")
    A(f"v_mov_b32 v{T0+4}, {f2u(2.0**32):#x}")
    A(f"v_mov_b32 v{T0+1}, 0x3f803f80")
    for r in range(4): A(f"v_accvgpr_write_b32 a{ONES+r}, v{T0+1}")
    A(f"v_lshlrev_b32 v{T0+2}, 2, v6"); A(f"v_sub_u32 v{T0+2}, v7, v{T0+2}")
    A(f"s_lshl_b32 s{sT}, s{sI}, 2"); A(f"s_add_u32 s{sT}, s{sT}, s{sW}"); A(f"s_lshl_b32 s{sT}, s{sT}, 5")
    A(f"v_add_u32 v{ZV}, s{sT}, v{T0+2}"); A(f"v_add_u32 v{ZV+1}, 16, v{ZV}")
    A(f"s_lshl_b32 s{sT}, s{sW}, 5")
    A(f"v_add_u32 v{ZV}, s{sT}, v{T0+2}"); A(f"v_add_u32 v{ZV+1}, 16, v{ZV}")
    A(f"v_mov_b32 v{ZV+2}, v{ZV}"); A(f"v_mov_b32 v{ZV+3}, v{ZV+1}")
    for qt in range(4):
        A(f"v_mov_b32 v{NEGM+qt}, 0")
        for t in range(2):
            for r in range(4): A(f"v_mov_b32 v{C(t,qt)+r}, 0")
    A(vm.wait("u1")); A("s_barrier")
    for kf in range(8): A(f"ds_read_b128 {ar(KF(kf),4)}, v{vKa} offset:{koff(kf)}")
    A(f"s_cmp_eq_u32 s{sI}, 0"); A("s_cbranch_scc0 K2_NM0")
    mask_block(A, BQ, "first")
    A("K2_NM0:")
    A("s_waitcnt lgkmcnt(0)")
    for t in range(2):
        for ks in range(4):
            for qt in range(4):
                d = vr(S(0, t, qt), 4)
                A(mfma16(d, ar(KF(t*4+ks), 4), vr(Q(qt, ks), 4), vr(C(t, qt), 4) if ks == 0 else d))
    for kf in range(8): A(f"ds_read_b128 {ar(KF(kf),4)}, v{vKa} offset:{16384 + koff(kf)}")
    A("s_nop 7")
    for qt in range(4):
        m = NEGM + qt; a, b = S(0, 0, qt), S(0, 1, qt)
        A(f"v_max3_f32 v{m}, v{a}, v{a+1}, v{a+2}"); A(f"v_max3_f32 v{m}, v{m}, v{a+3}, v{b}")
        A(f"v_max3_f32 v{m}, v{m}, v{b+1}, v{b+2}"); A(f"v_max_f32 v{m}, v{m}, v{b+3}")
    for sw in ("v_permlane16_swap_b32", "v_permlane32_swap_b32"):
        for qt in range(4): A(f"v_mov_b32 v{T0+8+qt}, v{NEGM+qt}")
        A("s_nop 1")
        for qt in range(4): A(f"{sw} v{NEGM+qt}, v{T0+8+qt}")
        A("s_nop 1")
        for qt in range(4): A(f"v_max_f32 v{NEGM+qt}, v{NEGM+qt}, v{T0+8+qt}")
    for qt in range(4):
        A(f"v_sub_f32 v{NEGM+qt}, 0, v{NEGM+qt}")
    for qt in range(4):
        for t in range(2):
            for r in range(4):
                A(f"v_add_f32 v{S(0,t,qt)+r}, v{S(0,t,qt)+r}, v{NEGM+qt}")
                A(f"v_mov_b32 v{C(t,qt)+r}, v{NEGM+qt}")
    A("s_waitcnt lgkmcnt(0)")
    P.stamp(A)
    ALL = (0, 1, 2, 3)
    w0 = vm.count_after("u2");
    for _ in range(4): vm.issue("u6")
    w1 = vm.count_after("u3")
    for _ in range(4): vm.issue("u7")
    w2 = vm.count_after("u4")
    A(f"s_add_u32 s{sKVo}, s{sKVo}, {5*16384}")
    emit_group(A, "first", [None, ALL, ALL, ALL], [None, ALL, ALL, ALL], [None, None, ALL, ALL],
               [0, 1, 1, 1], [0, 1, 1, 1], masks=[None, [(BQ, 0)], [(BQ, 0)], [(BQ, 0)]],
               first_pv=[0, 0, 1, 0], vmws=[None, w0, w1, w2])
    print("first waits", w0, w1, w2, file=sys.stderr)
    A(f"s_cmp_lt_u32 s{sI}, 2"); A("s_cbranch_scc1 K2_DUALM")
    A(f"s_sub_u32 s{sCNT}, s{sI}, 1")
    A(".p2align 6")
    A("K2_DUAL:")
    emit_group(A, "dual", [ALL]*4, [ALL]*4, [ALL]*4, [1]*4, [1]*4)
    A(f"s_sub_u32 s{sCNT}, s{sCNT}, 1"); A(f"s_cmp_lg_u32 s{sCNT}, 0"); A("s_cbranch_scc1 K2_DUAL")
    A("K2_DUALM:")
    A(f"s_cmp_eq_u32 s{sI}, 0"); A("s_cbranch_scc1 K2_TRANS")
    emit_group(A, "dualm", [ALL]*4, [ALL]*4, [ALL]*4, [1]*4, [1]*4, masks=[[(BQ, None)]]*4)
    A("K2_TRANS:")
    P.stamp(A)
    emit_group(A, "trans", [AQ]*4, [ALL, AQ, AQ, AQ], [ALL, ALL, AQ, AQ], [1]*4, [1]*4, masks=[[(AQ, 7)]]*4)
    epilogue(A, BQ, sRTB)
    A(f"s_cmp_eq_u32 s{sI}, 7"); A("s_cbranch_scc1 K2_DRAIN")
    A(f"s_lshl_b32 s{sCNT}, s{sI}, 1"); A(f"s_sub_u32 s{sCNT}, 13, s{sCNT}")
    A(".p2align 6")
    A("K2_SINGLE:")
    emit_group(A, "single", [AQ]*4, [AQ]*4, [AQ]*4, [1]*4, [1]*4)
    A(f"s_sub_u32 s{sCNT}, s{sCNT}, 1"); A(f"s_cmp_lg_u32 s{sCNT}, 0"); A("s_cbranch_scc1 K2_SINGLE")
    emit_group(A, "singlem", [AQ]*4, [AQ]*4, [AQ]*4, [0]*4, [1, 1, 1, 0], masks=[[(AQ, None)]]*4, vmws=[12, 8, 4, None])
    A("K2_DRAIN:")
    emit_group(A, "drain", [None]*4, [AQ, None, None, None], [AQ, AQ, None, None], [0]*4, [0]*4, vmws=[None]*4)
    P.stamp(A)
    epilogue(A, AQ, sRTA)
    if asmlib.PROF:
        A("s_waitcnt vmcnt(0)"); P.stamp(A); A("s_waitcnt lgkmcnt(0)"); P.flush(A, T0+36)
    A("K2_END:"); A("s_endpgm")
    return name, 512, 100, 256
```

```python
from asmlib import *
import asmlib, struct, sys
def f2u(f): return struct.unpack("<I", struct.pack("<f", f))[0]
STFLAG = " sc0 sc1"

def gen_ksplit(A, kind):
    k3 = kind == "k3"
    name = f"{kind}_kernel"; L = kind.upper()
    kernel_head(A, name)
    P = Prof(2 if k3 else 4)
    S_A, S_W, S_R, S_O1, S_O2, S_ST = 16, 20, 24, 28, 32, 56
    sW, sRB, sCB, sT, sT2, sKS, sAo, sWo, sM0, sCNT = 36, 37, 38, 39, 40, 41, 42, 43, 44, 45
    NKS = 128 if k3 else 44
    APITCH = NKS*1024
    vL, vA, vW, vTr, vRes = 1, 2, 6, 10, 14
    ACC = 24
    AF = 88
    WF = 152
    T = 184
    RED = 65536
    def acc(t, rt): return ACC + (t*4 + rt)*4
    def af(st, rt): return AF + st*16 + rt*4
    def wfr(par, t): return WF + par*16 + t*4
    A(f"s_cmp_ge_u32 s2, 256"); A(f"s_cbranch_scc1 {L}_END")
    P.stamp(A)
    A(f"s_load_dwordx2 s[4:5], s[0:1], {40 if k3 else 72}")
    A("s_load_dwordx2 s[12:13], s[0:1], 96")
    A(f"s_load_dwordx2 s[6:7], s[0:1], {0 if k3 else 80}")
    A(f"v_and_b32 v{vL}, 63, v0")
    A("v_lshrrev_b32 v2, 6, v0"); A("s_nop 0"); A(f"v_readfirstlane_b32 s{sW}, v2")
    A(f"s_lshr_b32 s{sT}, s2, 3"); A(f"s_and_b32 s{sCB}, s{sT}, 7"); A(f"s_lshr_b32 s{sT}, s{sT}, 3")
    A(f"s_and_b32 s{sRB}, s2, 7"); A(f"s_lshl_b32 s{sRB}, s{sRB}, 2"); A(f"s_add_u32 s{sRB}, s{sRB}, s{sT}")
    A("s_waitcnt lgkmcnt(0)")
    srd(A, S_W, 4, 5, (4 << 20) if k3 else 1376*1024)
    aoff = WS_CTX if k3 else WS_HH
    A(f"s_add_u32 s{S_A}, s12, {aoff}"); A(f"s_addc_u32 s{S_A+1}, s13, 0"); A(f"s_mov_b32 s{S_A+2}, {128*APITCH}"); A(f"s_mov_b32 s{S_A+3}, 0x00020000")
    if k3:
        srd(A, S_R, 6, 7, 2 << 20)
        A(f"s_add_u32 s{S_O1}, s12, {WS_HR}"); A(f"s_addc_u32 s{S_O1+1}, s13, 0"); A(f"s_mov_b32 s{S_O1+2}, {2<<20}"); A(f"s_mov_b32 s{S_O1+3}, 0x00020000")
        A(f"s_add_u32 s{S_O2}, s12, {WS_H}"); A(f"s_addc_u32 s{S_O2+1}, s13, 0"); A(f"s_mov_b32 s{S_O2+2}, {2<<20}"); A(f"s_mov_b32 s{S_O2+3}, 0x00020000")
        A(f"s_add_u32 s{S_ST}, s12, {WS_ST}"); A(f"s_addc_u32 s{S_ST+1}, s13, 0"); A(f"s_mov_b32 s{S_ST+2}, {2048*64}"); A(f"s_mov_b32 s{S_ST+3}, 0x00020000")
    else:
        A(f"s_add_u32 s{S_R}, s12, {WS_HR}"); A(f"s_addc_u32 s{S_R+1}, s13, 0"); A(f"s_mov_b32 s{S_R+2}, {2<<20}"); A(f"s_mov_b32 s{S_R+3}, 0x00020000")
        srd(A, S_O1, 6, 7, 2 << 20)
    A(f"v_lshlrev_b32 v{vA}, 4, v{vL}")
    for rt in range(1, 4): A(f"v_add_u32 v{vA+rt}, {rt*APITCH}, v{vA}")
    A(f"v_lshrrev_b32 v{T}, 3, v{vL}"); A(f"v_and_b32 v{T+1}, 7, v{vL}")
    A(f"v_lshrrev_b32 v{T+2}, 1, v{T}"); A(f"v_lshrrev_b32 v{T+3}, 1, v{T+1}"); A(f"v_xor_b32 v{T+2}, v{T+2}, v{T+3}")
    A(f"v_and_b32 v{T+2}, 3, v{T+2}")
    A(f"v_and_b32 v{T+3}, 1, v{T+1}"); A(f"v_lshlrev_b32 v{T+3}, 4, v{T+3}"); A(f"v_lshl_add_u32 v{T+3}, v{T+2}, 5, v{T+3}")
    A(f"v_lshl_add_u32 v{T+3}, v{T}, 10, v{T+3}")
    A(f"s_lshl_b32 s{sT}, s{sCB}, 7"); A(f"v_add_u32 v{vW}, s{sT}, v{T+3}")
    for m in range(1, 4): A(f"v_add_u32 v{vW+m}, {m*7168}, v{vW}")
    if k3: A(f"s_lshl_b32 s{sKS}, s{sW}, 5")
    else: A(f"s_mul_i32 s{sKS}, s{sW}, 11")
    A(f"s_lshl_b32 s{sT}, s{sRB}, 2"); A(f"s_mul_i32 s{sAo}, s{sT}, {APITCH}"); A(f"s_lshl_b32 s{sT}, s{sKS}, 10"); A(f"s_add_u32 s{sAo}, s{sAo}, s{sT}")
    A(f"s_lshl_b32 s{sWo}, s{sKS}, 15")
    A(f"s_lshl_b32 s{sM0}, s{sW}, 14")
    def loads(st):
        r = [(f"s_add_u32 m0, s{sM0}, {st*4096}", SAL)]
        r.append((f"s_nop 0", SAL))
        for m in range(4): r.append((f"buffer_load_dwordx4 v{vW+m}, s[{S_W}:{S_W+3}], s{sWo} offen offset:{m*1024} lds", MEM))
        for rt in range(4): r.append((f"buffer_load_dwordx4 {vr(af(st, rt), 4)}, v{vA+rt}, s[{S_A}:{S_A+3}], s{sAo} offen", MEM))
        r.append((f"s_add_u32 s{sWo}, s{sWo}, 32768", SAL)); r.append((f"s_add_u32 s{sAo}, s{sAo}, 1024", SAL))
        return r
    for st in range(4):
        for ins, k in loads(st): A(ins)
    A(f"v_lshrrev_b32 v{T}, 3, v0"); A(f"v_and_b32 v{T+1}, 7, v0")
    A(f"v_lshlrev_b32 v{T+4}, 10, v{T}"); A(f"v_lshl_add_u32 v{T+4}, v{T+1}, 4, v{T+4}")
    A(f"s_lshl_b32 s{sT}, s{sRB}, 16"); A(f"s_lshl_b32 s{sT2}, s{sCB}, 7"); A(f"s_add_u32 s46, s{sT}, s{sT2}")
    A(f"s_add_u32 s47, s46, 32768")
    A(f"buffer_load_dwordx4 {vr(vRes,4)}, v{T+4}, s[{S_R}:{S_R+3}], s46 offen")
    A(f"buffer_load_dwordx4 {vr(vRes+4,4)}, v{T+4}, s[{S_R}:{S_R+3}], s47 offen")
    A(f"v_lshrrev_b32 v{T+5}, 4, v{vL}"); A(f"v_and_b32 v{T+6}, 15, v{vL}")
    A(f"v_lshrrev_b32 v{T+7}, 3, v{T+6}"); A(f"v_lshl_add_u32 v{T+7}, v{T+5}, 1, v{T+7}"); A(f"v_and_b32 v{T+7}, 3, v{T+7}")
    A(f"v_lshrrev_b32 v{T+8}, 2, v{T+6}"); A(f"v_lshl_add_u32 v{T+8}, v{T+5}, 2, v{T+8}"); A(f"v_lshlrev_b32 v{T+8}, 7, v{T+8}")
    A(f"v_and_b32 v{T+9}, 3, v{T+6}"); A(f"v_lshl_add_u32 v{T+8}, v{T+9}, 3, v{T+8}")
    A(f"v_add_u32 v{T+8}, s{sM0}, v{T+8}")
    for t in range(4):
        A(f"v_xor_b32 v{T+9}, {t}, v{T+7}"); A(f"v_lshl_add_u32 v{vTr+t}, v{T+9}, 5, v{T+8}")
    def trs(st, par):
        return [f"ds_read_b64_tr_b16 v[{wfr(par,t)+2*j}:{wfr(par,t)+2*j+1}], v{vTr+t} offset:{st*4096 + j*2048}" for t in range(4) for j in range(2)]
    P.stamp(A)
    A("s_waitcnt vmcnt(26)")
    for ins in trs(0, 0): A(ins)
    def step2(st, par, first, do_load, vmw, do_tr=True):
        ms = [mfma16(vr(acc(t, rt), 4), vr(wfr(par, t), 4), vr(af(st, rt), 4), "0" if first else vr(acc(t, rt), 4)) for rt in range(4) for t in range(4)]
        A("s_waitcnt lgkmcnt(0)")
        if do_tr: A(f"s_waitcnt vmcnt({vmw})")
        W = Weave(ms)
        g = 0
        if do_tr:
            for ins in trs((st+1) % 4, 1 - par): g = W.put(ins, g, 1, MEM)
        if do_load:
            g = W.put(f"s_add_u32 m0, s{sM0}, {st*4096}", 4, 1, SAL)
            for m in range(4): g = W.put(f"buffer_load_dwordx4 v{vW+m}, s[{S_W}:{S_W+3}], s{sWo} offen offset:{m*1024} lds", g+1, 2, MEM)
            for rt in range(3): g = W.put(f"buffer_load_dwordx4 {vr(af(st, rt), 4)}, v{vA+rt}, s[{S_A}:{S_A+3}], s{sAo} offen", max(g+1, 4*rt+4), 2, MEM)
            W.tail.append(f"buffer_load_dwordx4 {vr(af(st, 3), 4)}, v{vA+3}, s[{S_A}:{S_A+3}], s{sAo} offen")
            W.tail.append(f"s_add_u32 s{sWo}, s{sWo}, 32768"); W.tail.append(f"s_add_u32 s{sAo}, s{sAo}, 1024")
        W.emit(A)
    if k3:
        for s in range(4): step2(s, s % 2, s == 0, True, 18 if s < 2 else 16)
        A(f"s_mov_b32 s{sCNT}, 6")
        A(f"{L}_LOOP:")
        for s in range(4): step2(s, s % 2, False, True, 16)
        A(f"s_sub_u32 s{sCNT}, s{sCNT}, 1"); A(f"s_cmp_lg_u32 s{sCNT}, 0"); A(f"s_cbranch_scc1 {L}_LOOP")
        step2(0, 0, False, False, 16); step2(1, 1, False, False, 8); step2(2, 0, False, False, 0); step2(3, 1, False, False, 0, do_tr=False)
    else:
        n = 11
        for s in range(n):
            do_load = s + 4 < n
            remaining_after = min(n - 1, s + 3) - (s + 1)
            vmw = 8*remaining_after + (2 if s < 2 else 0)
            if s == n - 1:
                A(f"s_cmp_eq_u32 s{sW}, 3"); A(f"s_cbranch_scc1 {L}_SKIP")
            step2(s % 4, s % 2, s == 0, do_load, vmw, do_tr=(s + 1 < n))
        A(f"{L}_SKIP:")
    P.stamp(A)
    A("s_nop 7")
    A(f"v_and_b32 v{T+5}, 15, v{vL}"); A(f"v_lshrrev_b32 v{T+6}, 4, v{vL}")
    A(f"s_mul_i32 s{sT}, s{sW}, 17408"); A(f"s_add_u32 s{sT}, s{sT}, {RED}")
    A(f"v_mul_u32_u24 v{T+5}, 272, v{T+5}"); A(f"v_lshl_add_u32 v{T+5}, v{T+6}, 4, v{T+5}"); A(f"v_add_u32 v{T+5}, s{sT}, v{T+5}")
    for rt in range(4):
        for t in range(4):
            A(f"ds_write_b128 v{T+5}, {vr(acc(t, rt), 4)} offset:{rt*16*272 + t*64}")
    A("s_waitcnt lgkmcnt(0)"); A("s_barrier")
    A(f"v_mul_u32_u24 v{T+5}, 272, v{T}"); A(f"v_lshl_add_u32 v{T+5}, v{T+1}, 5, v{T+5}"); A(f"v_add_u32 v{T+5}, {RED}, v{T+5}")
    R = 24
    for p in range(2):
        for w in range(4):
            A(f"ds_read_b128 {vr(R+32*p+8*w,4)}, v{T+5} offset:{w*17408 + p*32*272}")
            A(f"ds_read_b128 {vr(R+32*p+8*w+4,4)}, v{T+5} offset:{w*17408 + p*32*272 + 16}")
    A("s_waitcnt vmcnt(0)")
    for p in range(2):
        base = R + 32*p
        A(f"s_waitcnt lgkmcnt({8 if p == 0 else 0})")
        for w in range(1, 4):
            for e in range(8): A(f"v_add_f32 v{base+e}, v{base+e}, v{base+8*w+e}")
        for i in range(4):
            A(f"v_lshlrev_b32 v{T+10}, 16, v{vRes+4*p+i}"); A(f"v_and_b32 v{T+11}, 0xffff0000, v{vRes+4*p+i}")
            A(f"v_add_f32 v{base+2*i}, v{base+2*i}, v{T+10}"); A(f"v_add_f32 v{base+2*i+1}, v{base+2*i+1}, v{T+11}")
        pk = base + 8
        for i in range(4): A(f"v_cvt_pk_bf16_f32 v{pk+i}, v{base+2*i}, v{base+2*i+1}")
        A(f"buffer_store_dwordx4 {vr(pk,4)}, v{T+4}, s[{S_O1}:{S_O1+3}], s{46+p} offen" + (STFLAG if k3 else ""))
        if k3:
            if p == 0:
                A(f"v_lshrrev_b32 v{T+12}, 4, v{T}"); A(f"v_lshlrev_b32 v{T+12}, 14, v{T+12}")
                A(f"v_lshrrev_b32 v{T+13}, 2, v{T+1}"); A(f"v_lshl_add_u32 v{T+12}, v{T+13}, 10, v{T+12}")
                A(f"v_and_b32 v{T+13}, 3, v{T+1}"); A(f"v_lshl_add_u32 v{T+12}, v{T+13}, 8, v{T+12}")
                A(f"v_and_b32 v{T+13}, 15, v{T}"); A(f"v_lshl_add_u32 v{T+12}, v{T+13}, 4, v{T+12}")
                A(f"s_lshl_b32 s48, s{sRB}, 16"); A(f"s_lshl_b32 s{sT}, s{sCB}, 11"); A(f"s_add_u32 s48, s48, s{sT}"); A("s_add_u32 s49, s48, 32768")
            A(f"buffer_store_dwordx4 {vr(pk,4)}, v{T+12}, s[{S_O2}:{S_O2+3}], s{48+p} offen{STFLAG}")
            u = base + 16
            for i in range(4):
                A(f"v_lshlrev_b32 v{u+2*i}, 16, v{pk+i}"); A(f"v_and_b32 v{u+2*i+1}, 0xffff0000, v{pk+i}")
            s1, s2 = base + 24, base + 25
            A(f"v_add_f32 v{s1}, v{u}, v{u+1}"); A(f"v_mul_f32 v{s2}, v{u}, v{u}")
            A(f"v_fmac_f32 v{s2}, v{u+1}, v{u+1}")
            for e in range(2, 8):
                A(f"v_add_f32 v{s1}, v{s1}, v{u+e}"); A(f"v_fmac_f32 v{s2}, v{u+e}, v{u+e}")
            for dpp in ("quad_perm:[1,0,3,2]", "quad_perm:[2,3,0,1]", "row_half_mirror"):
                A("s_nop 1")
                A(f"v_add_f32_dpp v{s1}, v{s1}, v{s1} {dpp} row_mask:0xf bank_mask:0xf")
                A(f"v_add_f32_dpp v{s2}, v{s2}, v{s2} {dpp} row_mask:0xf bank_mask:0xf")
            if p == 0:
                A(f"v_lshlrev_b32 v{T+14}, 6, v{T}")
                A(f"s_lshl_b32 s50, s{sRB}, 12"); A(f"s_lshl_b32 s{sT}, s{sCB}, 3"); A(f"s_add_u32 s50, s50, s{sT}"); A("s_add_u32 s51, s50, 2048")
            A(f"v_cmp_eq_u32 vcc, 0, v{T+1}"); A("s_and_saveexec_b64 s[52:53], vcc")
            A(f"buffer_store_dwordx2 v[{s1}:{s2}], v{T+14}, s[{S_ST}:{S_ST+3}], s{50+p} offen{STFLAG}")
            A("s_mov_b64 exec, s[52:53]")
    if asmlib.PROF:
        A("s_waitcnt vmcnt(0)"); P.stamp(A); A("s_waitcnt lgkmcnt(0)"); P.flush(A, T+20)
    A(f"{L}_END:"); A("s_endpgm")
    return name, 256, 100, 256
def gen_k3(A): return gen_ksplit(A, "k3")
def gen_k5(A): return gen_ksplit(A, "k5")
```

```python
from asmlib import *
import asmlib, struct, sys
def f2u(f): return struct.unpack("<I", struct.pack("<f", f))[0]
STFLAG = " sc0 sc1"
NST = 7
STG = 20480

def gen_k4(A):
    name = "k4_kernel"
    kernel_head(A, name)
    P = Prof(3)
    S_H, S_W, S_ST, S_HH = 16, 20, 24, 28
    sW, sRB, sFB, sT, sT2, sWR, sWC, sAo, sWo, sM0 = 36, 37, 38, 39, 40, 41, 42, 43, 44, 45
    vL, vA, vW, vTrG, vAr = 1, 2, 3, 6, 10
    ACC = 16
    CS = 112
    AF = 128
    WF = 176
    ONE = 208
    MEAN = 212
    RS2 = 218
    T = 224
    def acc(m, rt): return ACC + (m*6 + rt)*4
    def af(par, rt): return AF + par*24 + rt*4
    def wf(par, m): return WF + par*16 + m*4
    A("s_lshr_b32 s4, s2, 3"); A("s_and_b32 s5, s2, 7"); A("s_mul_i32 s5, s5, 31"); A("s_add_u32 s4, s4, s5")
    A("s_cmp_ge_u32 s2, 248"); A("s_cbranch_scc1 K4_END")
    A("s_cmp_ge_u32 s4, 242"); A("s_cbranch_scc1 K4_END")
    P.stamp(A)
    A(f"s_mul_hi_u32 s{sFB}, s4, {(1 << 32)//11 + 1}"); A(f"s_mul_i32 s5, s{sFB}, 11"); A(f"s_sub_u32 s{sRB}, s4, s5")
    A("s_load_dwordx2 s[6:7], s[0:1], 56"); A("s_load_dwordx2 s[8:9], s[0:1], 64"); A("s_load_dwordx2 s[12:13], s[0:1], 96")
    A(f"v_and_b32 v{vL}, 63, v0")
    A("v_lshrrev_b32 v2, 6, v0"); A("s_nop 0"); A(f"v_readfirstlane_b32 s{sW}, v2")
    A(f"s_lshr_b32 s{sWR}, s{sW}, 1"); A(f"s_and_b32 s{sWC}, s{sW}, 1")
    A("s_waitcnt lgkmcnt(0)")
    A(f"s_cmp_eq_u32 s{sWR}, 0")
    A(f"s_cselect_b32 s{S_W}, s6, s8"); A(f"s_cselect_b32 s{S_W+1}, s7, s9")
    A(f"s_mov_b32 s{S_W+2}, {512*2752}"); A(f"s_mov_b32 s{S_W+3}, 0x00020000")
    A(f"s_add_u32 s{S_H}, s12, {WS_H}"); A(f"s_addc_u32 s{S_H+1}, s13, 0"); A(f"s_mov_b32 s{S_H+2}, {2<<20}"); A(f"s_mov_b32 s{S_H+3}, 0x00020000")
    A(f"s_add_u32 s{S_ST}, s12, {WS_ST}"); A(f"s_addc_u32 s{S_ST+1}, s13, 0"); A(f"s_mov_b32 s{S_ST+2}, {2048*64}"); A(f"s_mov_b32 s{S_ST+3}, 0x00020000")
    A(f"s_add_u32 s{S_HH}, s12, {WS_HH}"); A(f"s_addc_u32 s{S_HH+1}, s13, 0"); A(f"s_mov_b32 s{S_HH+2}, {128*44*1024}"); A(f"s_mov_b32 s{S_HH+3}, 0x00020000")
    A(f"v_lshlrev_b32 v{T}, 4, v{vL}")
    A(f"s_mul_i32 s{sT}, s{sW}, {3*16384}"); A(f"v_add_u32 v{vA}, s{sT}, v{T}")
    A(f"v_add_u32 v12, {16384-1024}, v{vA}"); A(f"v_add_u32 v13, {2*(16384-1024)}, v{vA}")
    A(f"s_mul_i32 s{sAo}, s{sRB}, {12*16384}")
    A(f"v_lshrrev_b32 v{T+1}, 3, v{vL}"); A(f"v_and_b32 v{T+2}, 7, v{vL}")
    A(f"v_lshrrev_b32 v{T+3}, 1, v{T+1}"); A(f"v_and_b32 v{T+3}, 1, v{T+3}")
    A(f"v_lshrrev_b32 v{T+4}, 1, v{T+2}")
    A(f"v_and_b32 v{T+5}, 1, v{T+2}"); A(f"v_lshlrev_b32 v{T+5}, 4, v{T+5}")
    A(f"s_lshl_b32 s{sT}, s{sFB}, 7"); A(f"v_add_u32 v{T+5}, s{sT}, v{T+5}")
    A(f"s_mov_b32 s{sT2}, 2752")
    for i in range(2):
        A(f"v_or_b32 v{T+6}, {i << 1}, v{T+3}"); A(f"v_xor_b32 v{T+6}, v{T+6}, v{T+4}")
        A(f"v_lshl_add_u32 v{T+6}, v{T+6}, 5, v{T+5}")
        A(f"s_lshl_b32 s{sT}, s{sWC}, 4"); A(f"s_add_u32 s{sT}, s{sT}, {8*i}")
        A(f"v_add_u32 v{T+7}, s{sT}, v{T+1}"); A(f"v_mul_lo_u32 v{T+7}, v{T+7}, s{sT2}")
        A(f"v_add_u32 v{vW+i}, v{T+7}, v{T+6}")
        if i: A(f"v_subrev_u32 v{vW+i}, 1024, v{vW+i}")
    A(f"s_mul_i32 s46, s{sW}, 3072")
    A(f"s_lshl_b32 s47, s{sWR}, 12"); A(f"s_lshl_b32 s{sT}, s{sWC}, 11"); A(f"s_add_u32 s47, s47, s{sT}"); A("s_add_u32 s47, s47, 12288")
    def loads(ks):
        st = ks % NST
        return [(f"s_add_u32 m0, s46, {st*STG}", SAL), (f"s_add_u32 s48, s{sAo}, {ks*1024}", SAL),
                (f"buffer_load_dwordx4 v{vA}, s[{S_H}:{S_H+3}], s48 offen lds", MEM),
                (f"buffer_load_dwordx4 v12, s[{S_H}:{S_H+3}], s48 offen offset:1024 lds", MEM),
                (f"buffer_load_dwordx4 v13, s[{S_H}:{S_H+3}], s48 offen offset:2048 lds", MEM),
                (f"s_add_u32 m0, s47, {st*STG}", SAL), (f"s_mov_b32 s49, {ks*32*2752}", SAL),
                (f"buffer_load_dwordx4 v{vW}, s[{S_W}:{S_W+3}], s49 offen lds", MEM),
                (f"buffer_load_dwordx4 v{vW+1}, s[{S_W}:{S_W+3}], s49 offen offset:1024 lds", MEM)]
    vm = VM()
    NPRE = NST - 1
    for ks in range(NPRE):
        for ins, k in loads(ks):
            A(ins)
            if k == MEM: vm.issue(f"s{ks}")
    A(f"v_and_b32 v{T+1}, 15, v{vL}"); A(f"v_lshrrev_b32 v{T+2}, 4, v{vL}")
    A(f"v_lshlrev_b32 v{T+3}, 6, v{T+1}"); A(f"v_lshl_add_u32 v{T+3}, v{T+2}, 4, v{T+3}")
    A(f"s_mul_i32 s{sT}, s{sRB}, {192*64}"); A(f"s_mul_i32 s{sT2}, s{sWR}, {96*64}"); A(f"s_add_u32 s50, s{sT}, s{sT2}")
    SV = 64
    SV = 232
    for rt in range(6):
        A(f"s_add_u32 s51, s50, {rt*1024}")
        A(f"buffer_load_dwordx4 {vr(SV+4*rt,4)}, v{T+3}, s[{S_ST}:{S_ST+3}], s51 offen"); vm.issue("st")
    A(f"s_mul_i32 s{sT}, s{sWR}, 6144"); A(f"v_add_u32 v{vAr}, s{sT}, v{T}"); A(f"v_add_u32 v{vAr+1}, {3*STG}, v{vAr}")
    A(f"v_lshrrev_b32 v{T+4}, 3, v{T+1}"); A(f"v_and_b32 v{T+5}, 1, v{T+2}"); A(f"v_lshl_or_b32 v{T+4}, v{T+5}, 1, v{T+4}")
    A(f"v_lshrrev_b32 v{T+5}, 2, v{T+1}"); A(f"v_lshl_add_u32 v{T+5}, v{T+2}, 3, v{T+5}"); A(f"v_lshlrev_b32 v{T+5}, 7, v{T+5}")
    A(f"v_and_b32 v{T+6}, 3, v{T+1}"); A(f"v_lshl_add_u32 v{T+5}, v{T+6}, 3, v{T+5}"); A(f"v_add_u32 v{T+5}, 12288, v{T+5}")
    A(f"s_lshl_b32 s{sT}, s{sWC}, 1")
    for t in range(2):
        A(f"s_add_u32 s{sT2}, s{sT}, {t}"); A(f"v_xor_b32 v{T+6}, s{sT2}, v{T+4}")
        A(f"v_lshl_add_u32 v{vTrG+t}, v{T+6}, 5, v{T+5}")
        A(f"v_add_u32 v{vTrG+2+t}, {3*STG}, v{vTrG+t}")
    A(f"v_mov_b32 v{T+6}, 0x3f803f80")
    for r in range(4): A(f"v_mov_b32 v{ONE+r}, v{T+6}")
    vAr3, vTr3 = 14, [15, 5]
    A(f"v_add_u32 v{vAr3}, {6*STG}, v{vAr}")
    for t in range(2): A(f"v_add_u32 v{vTr3[t]}, {6*STG}, v{vTrG+t}")
    def a_read(ks, par, rt):
        st = ks % NST; w, o = divmod(st, 3)
        b = [vAr, vAr+1, vAr3][w]
        return f"ds_read_b128 {vr(af(par, rt), 4)}, v{b} offset:{o*STG + rt*1024}"
    def w_read(ks, par, m, j):
        st = ks % NST; w, o = divmod(st, 3)
        t = m % 2
        b = [vTrG+t, vTrG+2+t, vTr3[t]][w]
        d = wf(par, m) + 2*j
        return f"ds_read_b64_tr_b16 v[{d}:{d+1}], v{b} offset:{o*STG + (m//2)*4096 + j*512}"
    P.stamp(A)
    A(vm.wait("s0")); A("s_barrier")
    for m in range(4):
        for j in range(2): A(w_read(0, 0, m, j))
    for rt in range(6): A(a_read(0, 0, rt))
    for ks in range(16):
        par = ks % 2
        ms = []
        for m in range(4):
            ms.append(mfma16(vr(CS+4*m, 4), vr(wf(par, m), 4), vr(ONE, 4), "0" if ks == 0 else vr(CS+4*m, 4)))
            for rt in range(6):
                ms.append(mfma16(vr(acc(m, rt), 4), vr(wf(par, m), 4), vr(af(par, rt), 4), "0" if ks == 0 else vr(acc(m, rt), 4)))
        A("s_waitcnt lgkmcnt(0)")
        if ks + 1 < 16:
            A(vm.wait(f"s{ks+1}")); A("s_barrier")
        W = Weave(ms)
        g = 0
        if ks + 1 < 16:
            for m in range(4):
                for j in range(2): g = W.put(w_read(ks+1, 1-par, m, j), g, 1, MEM)
            for rt in range(6): g = W.put(a_read(ks+1, 1-par, rt), g, 1, MEM)
        nk = ks + NPRE
        if nk < 16:
            g += 1
            lst = loads(nk)
            for ins, k in lst:
                if k == SAL: g = W.put(ins, g, 1, SAL)
                else: g = W.put(ins, g + 1, 2, MEM); vm.issue(f"s{nk}")
        W.emit(A)
    P.stamp(A)
    A("s_waitcnt vmcnt(0)")
    for rt in range(6):
        b = SV + 4*rt
        A(f"v_add_f32 v{b}, v{b}, v{b+2}"); A(f"v_add_f32 v{b+1}, v{b+1}, v{b+3}")
    for sw in ("v_permlane16_swap_b32", "v_permlane32_swap_b32"):
        for rt in range(6):
            b = SV + 4*rt
            A(f"v_mov_b32 v{b+2}, v{b}"); A(f"v_mov_b32 v{b+3}, v{b+1}")
        A("s_nop 1")
        for rt in range(6):
            b = SV + 4*rt
            A(f"{sw} v{b}, v{b+2}"); A(f"{sw} v{b+1}, v{b+3}")
        A("s_nop 1")
        for rt in range(6):
            b = SV + 4*rt
            A(f"v_add_f32 v{b}, v{b}, v{b+2}"); A(f"v_add_f32 v{b+1}, v{b+1}, v{b+3}")
    for rt in range(6):
        b = SV + 4*rt
        A(f"v_mul_f32 v{MEAN+rt}, {f2u(1/512):#x}, v{b}")
        A(f"v_mul_f32 v{b+1}, {f2u(1/512):#x}, v{b+1}")
        A(f"v_fma_f32 v{b+1}, -v{MEAN+rt}, v{MEAN+rt}, v{b+1}")
        A(f"v_max_f32 v{b+1}, 0, v{b+1}")
        A(f"v_add_f32 v{b+1}, {f2u(1e-5):#x}, v{b+1}")
        A(f"v_rcp_f32 v{RS2+rt}, v{b+1}")
    A("s_nop 0")
    A(f"s_cmp_eq_u32 s{sFB}, 21"); A(f"s_cselect_b32 s{sT}, s{sWC}, 0"); A(f"s_cmp_lg_u32 s{sT}, 0"); A("s_cbranch_scc1 K4_DONE")
    A(f"s_mul_i32 s{sT}, s{sRB}, 12"); A(f"s_mul_i32 s{sT2}, s{sWR}, 6"); A(f"s_add_u32 s{sT}, s{sT}, s{sT2}"); A(f"s_mul_i32 s52, s{sT}, {44*1024}")
    A(f"s_lshl_b32 s{sT}, s{sFB}, 1"); A(f"s_add_u32 s{sT}, s{sT}, s{sWC}"); A(f"s_lshl_b32 s{sT}, s{sT}, 10"); A(f"s_add_u32 s52, s52, s{sT}")
    A(f"v_lshlrev_b32 v{T}, 4, v{vL}")
    for rt in range(6):
        tb = AF + (rt % 2)*16
        for t in range(2):
            for r in range(4):
                g_, u_ = acc(t, rt) + r, acc(2+t, rt) + r
                A(f"v_fma_f32 v{g_}, -v{MEAN+rt}, v{CS+4*t+r}, v{g_}")
                A(f"v_fma_f32 v{u_}, -v{MEAN+rt}, v{CS+4*(2+t)+r}, v{u_}")
                A(f"v_max_f32 v{g_}, 0, v{g_}")
                A(f"v_mul_f32 v{u_}, v{u_}, v{RS2+rt}")
                A(f"v_mul_f32 v{tb+4*t+r}, v{g_}, v{u_}")
        for i in range(4): A(f"v_cvt_pk_bf16_f32 v{tb+8+i}, v{tb+2*i}, v{tb+2*i+1}")
        A(f"buffer_store_dwordx4 {vr(tb+8,4)}, v{T}, s[{S_HH}:{S_HH+3}], s52 offen{STFLAG}")
        A(f"s_add_u32 s52, s52, {44*1024}")
    A("K4_DONE:")
    if asmlib.PROF:
        A("s_waitcnt vmcnt(0)"); P.stamp(A); A("s_waitcnt lgkmcnt(0)"); P.flush(A, T+4)
    A("K4_END:"); A("s_endpgm")
    return name, 256, 100, 256
```

```python
import sys
from asmlib import *
import k1, k2, k35, k4
def build(kernels):
    hdr = Asm(); A = Asm(); D = Asm()
    ref = open("sequential_preLN__compressed_kv_cla__glu_gated_reglu__prompt.s.ref").read().split("\n")
    for l in ref:
        if l.startswith("; Kernarg") or l.startswith(";   offset"): hdr(l)
    descs = []
    for (fn, grid, block, lds) in kernels:
        name, vg, sg, accum = fn(A)
        hdr(f"; @launch kernel={name} grid=({grid},1,1) block=({block},1,1) lds={lds}")
        descs.append((name, vg, sg, accum))
    hdr('.amdgcn_target "amdgcn-amd-amdhsa--gfx950"')
    for d in descs: kernel_desc(D, *d)
    return hdr.text() + A.text() + D.text()
if __name__ == "__main__":
    import asmlib
    if "--prof" in sys.argv:
        asmlib.PROF = True; sys.argv.remove("--prof")
    if "--profcyc" in sys.argv:
        asmlib.PROF = True; asmlib.PROF_INS = "s_memtime"; sys.argv.remove("--profcyc")
    ks = [(k1.gen_k1, 256, 256, 163840), (k2.gen_k2, 256, 256, 131072), (k35.gen_k3, 256, 256, 135168), (k4.gen_k4, 248, 256, 143360), (k35.gen_k5, 256, 256, 135168)]
    out = sys.argv[1] if len(sys.argv) > 1 else "cur.s"
    open(out, "w").write(build(ks))
```

```python
class Asm:
    def __init__(self):
        self.l = []
    def __call__(self, s):
        if isinstance(s, (list, tuple)):
            for x in s: self(x)
        else:
            self.l.append(s)
    def label(self, n): self.l.append(n + ":")
    def c(self, s): self.l.append("; " + s)
    def text(self): return "\n".join(self.l) + "\n"

def vr(b, n=1): return f"v{b}" if n == 1 else f"v[{b}:{b+n-1}]"
def ar(b, n=1): return f"a{b}" if n == 1 else f"a[{b}:{b+n-1}]"
def sr(b, n=1): return f"s{b}" if n == 1 else f"s[{b}:{b+n-1}]"

def mfma16(d, a, b, c):
    return f"v_mfma_f32_16x16x32_bf16 {d}, {a}, {b}, {c}"

class VM:
    def __init__(self): self.ops = []
    def issue(self, tag): self.ops.append(tag)
    def count_after(self, tag):
        idx = [i for i, t in enumerate(self.ops) if t == tag]
        assert idx, f"tag {tag} never issued"
        return len(self.ops) - 1 - idx[-1]
    def wait(self, tag):
        n = self.count_after(tag)
        return f"s_waitcnt vmcnt({min(n, 63)})"

MEM, VAL, SAL = 0, 1, 2
class Weave:
    def __init__(self, mfmas, cap=2):
        self.m = list(mfmas); self.cap = cap
        self.used = [0]*len(self.m)
        self.items = [[] for _ in self.m]
        self.seq = 0
        self.over = 0
        self.tail = []
    def put(self, instr, gap, cost=1, kind=VAL, force=False, last=None):
        n = len(self.m)
        hi = n - 1 if last is None else min(last, n - 1)
        gap = min(gap, hi)
        g = gap
        while g <= hi and self.used[g] + cost > self.cap and self.used[g] != 0:
            g += 1
        if g > hi:
            g = min(range(gap, hi + 1), key=lambda x: (self.used[x], x)); self.over += 1
        self.used[g] += cost
        self.items[g].append((kind, self.seq, instr)); self.seq += 1
        return g
    def at(self, instr, gap, cost=1, kind=VAL):
        self.used[gap] += cost
        self.items[gap].append((kind, self.seq, instr)); self.seq += 1
        return gap
    def emit(self, A):
        for g, m in enumerate(self.m):
            A(m)
            out = []
            for it in sorted(self.items[g], key=lambda x: x[1]):
                if it[0] == MEM:
                    i = len(out)
                    while i > 0 and out[i-1][0] == VAL: i -= 1
                    out.insert(i, it)
                else: out.append(it)
            prev = None
            for it in out:
                if prev is not None and prev[2].startswith("v_exp") and it[0] == VAL and not it[2].startswith("v_exp"):
                    dst = prev[2].split()[1].rstrip(",")
                    if dst in [x.rstrip(",") for x in it[2].split()[2:]]: A("s_nop 0")
                A(it[2]); prev = it
        for ins in self.tail: A(ins)

def srd(A, s, base_lo, base_hi, nbytes):
    A(f"s_mov_b32 s{s}, s{base_lo}")
    A(f"s_mov_b32 s{s+1}, s{base_hi}")
    A(f"s_mov_b32 s{s+2}, {nbytes}")
    A(f"s_mov_b32 s{s+3}, 0x00020000")

def kernel_head(A, name):
    A(".text"); A(f".globl {name}"); A(".p2align 8"); A(f".type {name},@function"); A(f"{name}:")

def kernel_desc(A, name, vgpr, sgpr, accum):
    A('.section .rodata,"a"'); A(".p2align 6"); A(f".amdhsa_kernel {name}")
    A(f"  .amdhsa_next_free_vgpr {vgpr}"); A(f"  .amdhsa_next_free_sgpr {sgpr}"); A(f"  .amdhsa_accum_offset {accum}")
    A("  .amdhsa_group_segment_fixed_size 0"); A("  .amdhsa_kernarg_size 104"); A("  .amdhsa_user_sgpr_count 2")
    A("  .amdhsa_user_sgpr_kernarg_segment_ptr 1"); A("  .amdhsa_system_sgpr_workgroup_id_x 1")
    A("  .amdhsa_float_denorm_mode_32 3")
    A(".end_amdhsa_kernel")

WS_XN   = 0
WS_KV   = 2 << 20
WS_CTX  = 34 << 20
WS_H    = 50 << 20
WS_HR   = 52 << 20
WS_ST   = 54 << 20
WS_HH   = 55 << 20
WS_CS   = 62 << 20
WS_WOF  = 64 << 20
WS_WDF  = 68 << 20
WS_WGF  = 70 << 20
KARG = dict(x=0, ckv=8, wq=16, wuk=24, wuv=32, wo=40, bx=48, wg=56, wu=64, wd=72, out=80, dbg=88, ws=96)

PROF = False
PROF_INS = "s_memrealtime"
WS_PROF = 200 << 20
class Prof:
    def __init__(self, kidx, sbase=80, nmax=8):
        self.k = kidx; self.sb = sbase; self.n = 0; self.nmax = nmax
    def stamp(self, A):
        if not PROF: return
        assert self.n < self.nmax
        A(f"{PROF_INS} s[{self.sb+2*self.n}:{self.sb+2*self.n+1}]"); self.n += 1
    def stamp_instr(self):
        if not PROF: return None
        assert self.n < self.nmax
        r = f"{PROF_INS} s[{self.sb+2*self.n}:{self.sb+2*self.n+1}]"; self.n += 1
        return r
    def flush(self, A, vtmp, ws_lo=None):
        if not PROF: return
        A("s_load_dwordx2 s[76:77], s[0:1], 96"); A("s_waitcnt lgkmcnt(0)")
        A(f"s_add_u32 s76, s76, {WS_PROF}"); A("s_addc_u32 s77, s77, 0"); A("s_mov_b32 s78, 0x1000000"); A("s_mov_b32 s79, 0x00020000")
        A(f"v_lshrrev_b32 v{vtmp}, 6, v0")
        A(f"v_lshlrev_b32 v{vtmp}, 5, v{vtmp}")
        A(f"s_lshl_b32 s75, s2, 8"); A(f"s_add_u32 s75, s75, {self.k * 1024 * 256}")
        A(f"v_add_u32 v{vtmp}, s75, v{vtmp}")
        A(f"v_and_b32 v{vtmp+1}, 63, v0"); A(f"v_cmp_eq_u32 vcc, 0, v{vtmp+1}"); A("s_and_saveexec_b64 s[72:73], vcc")
        for i in range(self.n):
            A(f"v_mov_b32 v{vtmp+1}, s{self.sb+2*i}")
            A(f"buffer_store_dword v{vtmp+1}, v{vtmp}, s[76:79], 0 offen offset:{4*i}")
        A("s_mov_b64 exec, s[72:73]")
```

```python
from asmlib import *

def allreduce64(A, v, t, op="v_add_f32"):
    for r in (8, 4, 2, 1):
        A("s_nop 1")
        A(f"{op}_dpp v{v}, v{v}, v{v} row_ror:{r} row_mask:0xf bank_mask:0xf")
    A(f"v_mov_b32 v{t}, v{v}"); A("s_nop 1")
    A(f"v_permlane16_swap_b32 v{v}, v{t}"); A("s_nop 1")
    A(f"{op} v{v}, v{v}, v{t}")
    A(f"v_mov_b32 v{t}, v{v}"); A("s_nop 1")
    A(f"v_permlane32_swap_b32 v{v}, v{t}"); A("s_nop 1")
    A(f"{op} v{v}, v{v}, v{t}")

QSCALE = 1.4426950408889634 / (128.0 ** 0.5)
import struct
def f2u(f): return struct.unpack("<I", struct.pack("<f", f))[0]

import os
FINE = os.environ.get('K1FINE')
PREFETCH = True
TOUCH = False
STFLAG = os.environ.get('K1ST', ' sc0 sc1')
def BUFOF(s): return {0:0,1:1,2:2,3:3,4:4,5:0,6:1,7:2}[s]
def gen_k1(A):
    name = "k1_kernel"
    kernel_head(A, name)
    S_C, S_W, S_X, S_XN, S_KV = 16, 20, 24, 28, 32
    sW, sST, sNT, sISV, sTMP, sTMP2 = 36, 37, 38, 39, 40, 41
    sWOFF, sCROW, sSTB, sM0W, sM0C = 42, 43, 44, 45, 46
    vLane = 1
    vWoff = 2
    vCoff = 6
    vTr = 10
    vCr0 = 14
    vCr1 = 18
    vSt0, vSt1 = 22, 23
    vTr2 = 24
    vCr2 = 28
    ACC = 32
    CF = 128
    PK = 160
    TMP = 192
    WRING = 96 * 1024
    def acc(s, rt, t): return ACC + s*32 + (rt*4 + t)*4
    def wfrag(ks, t): return (ks*4 + t)*4

    import asmlib
    P = Prof(0)
    A("s_cmp_ge_u32 s2, 256"); A("s_cbranch_scc1 K1_END")
    P.stamp(A)
    A("s_load_dwordx2 s[4:5], s[0:1], 0"); A("s_load_dwordx2 s[6:7], s[0:1], 8")
    A("s_load_dwordx2 s[8:9], s[0:1], 24"); A("s_load_dwordx2 s[10:11], s[0:1], 32")
    A("s_load_dwordx2 s[12:13], s[0:1], 96"); A("s_load_dwordx2 s[14:15], s[0:1], 16")
    A(f"v_and_b32 v{vLane}, 63, v0")
    A("v_lshrrev_b32 v2, 6, v0"); A("s_nop 0"); A(f"v_readfirstlane_b32 s{sW}, v2")
    A(f"s_lshr_b32 s{sTMP}, s2, 3")
    A(f"s_lshr_b32 s{sST}, s{sTMP}, 2")
    A(f"s_and_b32 s{sTMP}, s{sTMP}, 3")
    A(f"s_lshr_b32 s{sISV}, s{sTMP}, 1")
    A(f"s_and_b32 s{sTMP}, s{sTMP}, 1")
    A(f"s_and_b32 s{sNT}, s2, 7"); A(f"s_lshl_b32 s{sNT}, s{sNT}, 1"); A(f"s_add_u32 s{sNT}, s{sNT}, s{sTMP}")
    A("s_waitcnt lgkmcnt(0)")
    if not FINE: P.stamp(A)
    srd(A, S_C, 6, 7, 2 << 20)
    A(f"s_cmp_eq_u32 s{sISV}, 0")
    A(f"s_cselect_b32 s{S_W}, s8, s10"); A(f"s_cselect_b32 s{S_W+1}, s9, s11")
    A(f"s_mov_b32 s{S_W+2}, {4<<20}"); A(f"s_mov_b32 s{S_W+3}, 0x00020000")
    srd(A, S_X, 4, 5, 2 << 20)
    srd(A, S_XN, 12, 13, 2 << 20)
    A(f"s_add_u32 s{S_KV}, s12, {WS_KV}"); A(f"s_addc_u32 s{S_KV+1}, s13, 0")
    A(f"s_mov_b32 s{S_KV+2}, {32<<20}"); A(f"s_mov_b32 s{S_KV+3}, 0x00020000")
    A("s_mov_b32 s56, s14"); A("s_mov_b32 s57, s15"); A(f"s_mov_b32 s58, {4<<20}"); A("s_mov_b32 s59, 0x00020000")
    A(f"s_lshl_b32 s55, s2, 2"); A(f"s_add_u32 s55, s55, s{sW}"); A("s_lshl_b32 s55, s55, 12")
    vm = VM()
    t0, t1, t2, t3 = TMP+8, TMP+9, TMP+10, TMP+11
    WS0 = 64 * 1024
    def wslot(c): return [0,1,2,3,4,5,0,1,2,3,4,5,2,3,4,5][c]
    A(f"v_lshlrev_b32 v{vSt0}, 4, v{vLane}")
    if TOUCH:
        tq = TMP + 36
        A(f"v_lshrrev_b32 v{tq+3}, 3, v{vLane}"); A(f"v_lshlrev_b32 v{tq+3}, 10, v{tq+3}")
        A(f"v_and_b32 v{tq+1}, 7, v{vLane}"); A(f"v_lshl_add_u32 v{tq+3}, v{tq+1}, 7, v{tq+3}")
        A("s_lshr_b32 s61, s2, 3"); A("s_and_b32 s61, s61, 3"); A("s_lshl_b32 s61, s61, 16")
        A(f"s_lshl_b32 s62, s{sST}, 18"); A("s_add_u32 s61, s61, s62"); A(f"s_lshl_b32 s62, s{sW}, 14"); A("s_add_u32 s61, s61, s62"); A("s_add_u32 s62, s61, 8192")
    A(f"v_lshrrev_b32 v{t0}, 4, v{vLane}")
    A(f"v_and_b32 v{t1}, 15, v{vLane}")
    A(f"s_and_b32 s63, s{sST}, 3")
    A(f"s_add_u32 s{sTMP}, s{sW}, s63"); A(f"s_and_b32 s{sTMP}, s{sTMP}, 3"); A(f"s_lshl_b32 s{sTMP}, s{sTMP}, 8")
    A("s_lshl_b32 s63, s63, 20")
    for j in range(4):
        A(f"v_add_u32 v{t2}, {4*j}, v{t0}")
        A(f"v_xor_b32 v{t3}, v{t2}, v{t1}")
        A(f"v_lshlrev_b32 v{t3}, 4, v{t3}")
        A(f"v_mul_u32_u24 v{t2}, 1024, v{t2}")
        A(f"v_add3_u32 v{vCoff+j}, v{t2}, v{t3}, s{sTMP}")
        if j: A(f"v_subrev_u32 v{vCoff+j}, {j*1024}, v{vCoff+j}")
    A(f"s_lshl_b32 s{sCROW}, s{sST}, 18")
    A(f"s_lshl_b32 s{sM0C}, s{sW}, 13")
    A(f"s_lshl_b32 s{sM0W}, s{sW}, 12"); A(f"s_add_u32 s{sM0W}, s{sM0W}, {WS0}")

    def c_dma(s, m):
        buf = BUFOF(s) * 32768
        r = []
        if m % 4 == 0:
            mq = m // 4
            r.append((f"s_add_u32 m0, s{sM0C}, {buf + mq*4096}", SAL))
            r.append((f"s_add_u32 s49, s{sCROW}, {(s*32 + 16*mq)*1024}", SAL))
        j = m % 4
        r.append((f"buffer_load_dwordx4 v{vCoff+j}, s[{S_C}:{S_C+3}], s49 offen offset:{j*1024} lds", MEM))
        return r
    def w_dma(c, i):
        r = []
        if i == 0:
            r.append((f"s_add_u32 m0, s{sM0W}, {wslot(c)*16384}", SAL))
            r.append((f"s_add_u32 s50, s63, {c*262144}", SAL))
            r.append((f"s_and_b32 s50, s50, {16*262144 - 1}", SAL))
        r.append((f"buffer_load_dwordx4 v{vWoff+i}, s[{S_W}:{S_W+3}], s50 offen offset:{i*1024} lds", MEM))
        return r
    def emit_group(fn, n, tag):
        for m in range(n):
            for ins, k in fn(m): A(ins)
            vm.issue(tag)
    A(f"v_lshrrev_b32 v{t0}, 5, v{vLane}")
    A(f"v_and_b32 v{t1}, 31, v{vLane}")
    A(f"s_and_b32 s{sTMP}, s{sW}, 1"); A(f"s_lshl_b32 s{sTMP}, s{sTMP}, 2")
    A(f"s_lshl_b32 s{sTMP2}, s{sW}, 3")
    A(f"v_lshrrev_b32 v{TMP+12}, 1, v{t1}")
    A(f"v_and_b32 v{TMP+13}, 1, v{t1}"); A(f"v_lshlrev_b32 v{TMP+13}, 4, v{TMP+13}")
    A(f"s_lshl_b32 s51, s{sNT}, 9")
    A(f"v_add_u32 v{TMP+13}, s51, v{TMP+13}")
    for i in range(4):
        A(f"v_add_u32 v{t2}, {2*i}, v{t0}")
        A(f"v_and_or_b32 v{t3}, v{t2}, 3, s{sTMP}")
        A(f"v_xor_b32 v{t3}, v{t3}, v{TMP+12}")
        A(f"v_lshl_add_u32 v{t3}, v{t3}, 5, v{TMP+13}")
        A(f"v_add_u32 v{t2}, s{sTMP2}, v{t2}")
        A(f"v_lshl_add_u32 v{vWoff+i}, v{t2}, 13, v{t3}")
        if i: A(f"v_subrev_u32 v{vWoff+i}, {i*1024}, v{vWoff+i}")
    emit_group(lambda m: w_dma(0, m), 4, "w0")
    emit_group(lambda m: c_dma(0, m), 8, "c0")
    emit_group(lambda m: c_dma(1, m), 8, "c1")
    emit_group(lambda m: w_dma(1, m), 4, "w1")
    emit_group(lambda m: w_dma(2, m), 4, "w2")
    A(f"s_lshl_b32 s{sTMP}, s2, 3"); A(f"s_lshl_b32 s{sTMP2}, s{sW}, 1"); A(f"s_add_u32 s48, s{sTMP}, s{sTMP2}")
    A(f"s_lshl_b32 s47, s48, 10")
    if not FINE: P.stamp(A)
    A(f"v_lshrrev_b32 v{t0}, 4, v{vLane}")
    A(f"v_and_b32 v{t1}, 15, v{vLane}")
    A(f"v_lshlrev_b32 v{t3}, 8, v{t1}")
    for b in range(4):
        A(f"v_add_u32 v{t2}, {4*b}, v{t0}")
        A(f"v_xor_b32 v{t2}, v{t2}, v{t1}")
        A(f"v_lshl_add_u32 v{vCr0+b}, v{t2}, 4, v{t3}")
        A(f"v_add_u32 v{vCr1+b}, 0x10000, v{vCr0+b}")
        A(f"v_add_u32 v{vCr2+b}, 0x20000, v{vCr0+b}")
    A(f"v_lshrrev_b32 v{t2}, 2, v{t1}")
    A(f"v_and_b32 v{t3}, 1, v{t0}"); A(f"v_lshl_or_b32 v{t3}, v{t3}, 2, v{t2}")
    A(f"v_lshl_add_u32 v{TMP+12}, v{t0}, 3, v{t2}")
    A(f"v_lshlrev_b32 v{TMP+12}, 9, v{TMP+12}")
    A(f"v_and_b32 v{TMP+13}, 3, v{t1}")
    A(f"v_lshl_add_u32 v{TMP+12}, v{TMP+13}, 3, v{TMP+12}")
    A(f"v_add_u32 v{TMP+12}, {WS0}, v{TMP+12}")
    A(f"s_lshl_b32 s{sTMP}, s{sW}, 2")
    for t in range(4):
        A(f"s_add_u32 s{sTMP2}, s{sTMP}, {t}")
        A(f"v_xor_b32 v{TMP+13}, s{sTMP2}, v{t3}")
        A(f"v_lshl_add_u32 v{vTr+t}, v{TMP+13}, 5, v{TMP+12}")
        A(f"v_add_u32 v{vTr2+t}, 0x10000, v{vTr+t}")
    A(f"s_lshr_b32 s{sTMP}, s{sW}, 1"); A(f"s_lshl_b32 s{sTMP2}, s{sNT}, 1"); A(f"s_add_u32 s{sTMP}, s{sTMP}, s{sTMP2}")
    A(f"s_lshl_b32 s{sTMP}, s{sTMP}, 6"); A(f"s_lshl_b32 s{sTMP2}, s{sST}, 3"); A(f"s_add_u32 s{sTMP}, s{sTMP}, s{sTMP2}")
    A(f"s_lshl_b32 s{sSTB}, s{sTMP}, 14")
    A(f"s_and_b32 s{sTMP}, s{sW}, 1")
    A(f"s_add_u32 s{sTMP2}, s{sISV}, 12"); A(f"s_lshl_b32 s{sTMP}, s{sTMP}, s{sTMP2}")
    A(f"s_add_u32 s{sSTB}, s{sSTB}, s{sTMP}")
    A(f"s_mov_b32 s{sTMP2}, 4096"); A(f"s_cmp_eq_u32 s{sISV}, 0"); A(f"s_cselect_b32 s{sTMP}, 0x2000, s{sTMP2}")
    A(f"v_add_u32 v{vSt1}, s{sTMP}, v{vSt0}")

    def ln_job(A, vm):
        A(vm.wait("x"))
        X = TMP + 16
        for r in range(2):
            for i in range(4):
                A(f"v_lshlrev_b32 v{X+8*r+2*i}, 16, v{TMP+4*r+i}")
                A(f"v_and_b32 v{X+8*r+2*i+1}, 0xffff0000, v{TMP+4*r+i}")
        for r in range(2):
            m = TMP + 8 + r
            x = X + 8*r
            A(f"v_add_f32 v{m}, v{x}, v{x+1}")
            for i in range(2, 8): A(f"v_add_f32 v{m}, v{m}, v{x+i}")
            allreduce64(A, m, TMP+10)
            A(f"v_mul_f32 v{m}, {f2u(1.0/512):#x}, v{m}")
            for i in range(8): A(f"v_sub_f32 v{x+i}, v{x+i}, v{m}")
            A(f"v_mul_f32 v{m}, v{x}, v{x}")
            for i in range(1, 8): A(f"v_fmac_f32 v{m}, v{x+i}, v{x+i}")
            allreduce64(A, m, TMP+10)
            A(f"v_mov_b32 v{TMP+11}, {f2u(1e-5):#x}")
            A(f"v_fmac_f32 v{TMP+11}, {f2u(1.0/512):#x}, v{m}")
            A(f"v_rsq_f32 v{m}, v{TMP+11}"); A("s_nop 0")
            A(f"v_mul_f32 v{m}, {f2u(QSCALE):#x}, v{m}")
            for i in range(8): A(f"v_mul_f32 v{x+i}, v{x+i}, v{m}")
            for i in range(4): A(f"v_cvt_pk_bf16_f32 v{TMP+4*r+i}, v{x+2*i}, v{x+2*i+1}")
        u0, u1 = TMP+12, TMP+13
        A(f"v_lshrrev_b32 v{u0}, 2, v{vLane}"); A(f"v_lshlrev_b32 v{u0}, 10, v{u0}")
        A(f"v_and_b32 v{u1}, 3, v{vLane}"); A(f"v_lshl_add_u32 v{u0}, v{u1}, 8, v{u0}")
        A("s_lshr_b32 s51, s48, 4"); A("s_lshl_b32 s51, s51, 14")
        A("s_and_b32 s52, s48, 15"); A("s_lshl_b32 s52, s52, 4"); A("s_add_u32 s51, s51, s52")
        A(f"buffer_store_dwordx4 v[{TMP}:{TMP+3}], v{u0}, s[{S_XN}:{S_XN+3}], s51 offen"); vm.issue("xs")
        A(f"buffer_store_dwordx4 v[{TMP+4}:{TMP+7}], v{u0}, s[{S_XN}:{S_XN+3}], s51 offen offset:16"); vm.issue("xs")

    A(f"s_cmp_eq_u32 s{sISV}, 0"); A("s_cbranch_scc0 K1_V")

    def body(isV, vm):
        P.n = 1 if FINE else 3
        def mf(s_acc, rt, t, ks, cf, first):
            d = vr(acc(s_acc, rt, t), 4); c = "0" if first else d
            w = ar(wfrag(ks, t), 4); x = vr(cf, 4)
            return mfma16(d, x, w, c) if isV else mfma16(d, w, x, c)
        def c_read(dst, s, ks, rt):
            b = ks % 4; kb = ks // 4; buf = BUFOF(s)
            base = [vCr0, vCr0, vCr1, vCr1, vCr2][buf] + b
            off = (buf % 2)*32768 + kb*8192 + rt*4096
            return f"ds_read_b128 v[{dst}:{dst+3}], v{base} offset:{off}"
        def tr_read(c, t, j):
            d = wfrag(c, t) + 2*j
            sl = wslot(c)
            return f"ds_read_b64_tr_b16 a[{d}:{d+1}], v{(vTr if sl < 4 else vTr2)+t} offset:{(sl%4)*16384 + j*2048}"
        A(vm.wait("c1")); A("s_barrier")
        if not FINE: P.stamp(A)
        for t in range(4):
            for j in range(2): A(tr_read(0, t, j))
        for i in range(4): A(c_read(CF + 4*i, i//2, 0, i % 2))
        A("s_waitcnt lgkmcnt(0)")
        for c in range(16):
            cfs = CF + 16*(c % 2); cfn = CF + 16*((c+1) % 2)
            ms = [mf(i//2, i % 2, t, c, cfs + 4*i, c == 0) for i in range(4) for t in range(4)]
            W = Weave(ms)
            pre = []
            if c < 15:
                tagw = f"w{c+1}"
                pre.append(vm.wait(tagw))
                pre.append("s_barrier")
            if c == 15: pre.append("s_barrier")
            A(pre)
            if FINE and c in (0, 3, 6, 9, 12, 13): P.stamp(A)
            g = 0
            if c < 15:
                for t in range(4):
                    for j in range(2): g = W.put(tr_read(c+1, t, j), g, 1, MEM)
                for i in range(4): g = W.put(c_read(cfn + 4*i, i//2, c+1, i % 2), g, 1, MEM)
            sched = {0:[3,4],1:[5,6],2:[7,8],3:[9],4:[10],5:[11],7:['c2'],8:[12],9:[13],10:[14],11:[15],14:['c3'],15:['c4']}
            g += 1
            for item in sched.get(c, []):
                isc = isinstance(item, str)
                n = 8 if isc else 4
                for i in range(n):
                    lst = c_dma(int(item[1]), i) if isc else w_dma(item, i)
                    for ins, k in lst:
                        if k == SAL: g = W.put(ins, g, 1, SAL)
                        else: g = W.put(ins, g+1 if len(lst) > 1 else g, 2, MEM); g += 1
                    vm.issue(item if isc else f"w{item}")
            if c == 6 and TOUCH:
                tq = TMP + 36
                g = W.put(f"buffer_load_dword v{tq+2}, v{tq+3}, s[{S_C}:{S_C+3}], s61 offen", g, 2, MEM); vm.issue("touch")
                g = W.put(f"buffer_load_dword v{tq+2}, v{tq+3}, s[{S_C}:{S_C+3}], s61 offen".replace("s61", "s62"), g+1, 2, MEM); vm.issue("touch")
            if c == 4:
                g = W.put(f"buffer_load_dwordx4 v[{TMP}:{TMP+3}], v{vSt0}, s[{S_X}:{S_X+3}], s47 offen", g, 2, MEM); vm.issue("x")
                g = W.put(f"buffer_load_dwordx4 v[{TMP+4}:{TMP+7}], v{vSt0}, s[{S_X}:{S_X+3}], s47 offen offset:1024", g+1, 2, MEM); vm.issue("x")
            W.emit(A)
            if c == 12: ln_job(A, vm)
            A("s_waitcnt lgkmcnt(0)")
        A(vm.wait("c2"))
        A("s_barrier")
        P.stamp(A)
        steps = [(s, ks) for s in range(2, 8) for ks in range(16)]
        def cfs(n): return CF + 8*(n % 3)
        for n in (0, 1):
            s, ks = steps[n]
            for rt in range(2): A(c_read(cfs(n) + 4*rt, s, ks, rt))
        ms = []
        for n, (s, ks) in enumerate(steps):
            for rt in range(2):
                for t in range(4):
                    ms.append(mf(s % 3, rt, t, ks, cfs(n) + 4*rt, ks == 0))
        W = Weave(ms)
        A("s_waitcnt lgkmcnt(2)")
        events = []
        vitems = []
        for n, (s, ks) in enumerate(steps):
            if n + 2 < len(steps):
                s2, k2 = steps[n+2]
                W.at(c_read(cfs(n+2), s2, k2, 0), 8*n + 0, 1, MEM)
                W.at(c_read(cfs(n+2) + 4, s2, k2, 1), 8*n + 0, 1, MEM)
            if n + 1 < len(steps):
                W.at("s_waitcnt lgkmcnt(2)" if n + 2 < len(steps) else "s_waitcnt lgkmcnt(0)", 8*n + 7, 1, SAL)
        def drain(sacc, s_idx, g0, pk, step):
            W.put(f"s_add_u32 s{53+(s_idx%2)}, s{sSTB}, {s_idx*16384}", g0, 1, SAL)
            for q in range(4):
                g = g0 + 1 + q*step
                if not isV:
                    rt, j = q//2, q % 2
                    srcs = [acc(sacc, rt, 2*j), acc(sacc, rt, 2*j)+2, acc(sacc, rt, 2*j+1), acc(sacc, rt, 2*j+1)+2]
                    vo, io = (vSt0 if rt == 0 else vSt1), j*1024
                else:
                    t = q
                    srcs = [acc(sacc, 0, t), acc(sacc, 0, t)+2, acc(sacc, 1, t), acc(sacc, 1, t)+2]
                    vo, io = (vSt0 if t < 2 else vSt1), 2048 + (t % 2)*1024
                p = pk + 4*q
                for i, sreg in enumerate(srcs):
                    g = W.put(f"v_cvt_pk_bf16_f32 v{p+i}, v{sreg}, v{sreg+1}", g, 1, VAL)
                g = W.put(f"buffer_store_dwordx4 v[{p}:{p+3}], v{vo}, s[{S_KV}:{S_KV+3}], s{53+(s_idx%2)} offen offset:{io}{STFLAG}", g+1, 2, MEM)
                vitems.append((g, W.seq, f"st{s_idx}"))
        lastdma = [-1]
        def dma_sub(s_idx, g0, step):
            for m in range(8):
                g = max(g0 + m*step, lastdma[0] + 1)
                lst = c_dma(s_idx, m)
                for ins, k in lst:
                    if k == SAL: g = W.put(ins, g, 1, SAL)
                    else:
                        g = W.put(ins, g+1 if len(lst) > 1 else g, 2, MEM)
                        vitems.append((g, W.seq, f"c{s_idx}"))
                        lastdma[0] = g
        for s in range(2, 8):
            g0 = (s-2)*128
            if s == 2:
                dma_sub(5, g0 + 1, 12)
                drain(0, 0, g0 + 9, PK, 11); drain(1, 1, g0 + 54, PK + 16, 11)
            else:
                if s + 3 < 8: dma_sub(s+3, g0 + 1, 12)
                drain((s-1) % 3, s-1, g0 + 9, PK + 16*(s % 2), 22)
        if PREFETCH:
            for i in range(4):
                g = W.put(f"buffer_load_dwordx4 v[{TMP+32}:{TMP+35}], v{vSt0}, s[56:59], s55 offen offset:{i*1024}", 4*128 + 60 + 9*i, 2, MEM)
                vitems.append((g, W.seq, "pf"))
        vitems.sort()
        vi = 0
        for s in range(2, 7):
            gb = (s-2)*128 + 13*8 + 2
            while vi < len(vitems) and vitems[vi][0] <= gb:
                vm.issue(vitems[vi][2]); vi += 1
            assert not any(g in (gb+1, gb+2) for g, _, _ in vitems)
            W.at(vm.wait(f"c{s+1}"), gb + 1, 1, SAL)
            W.at("s_barrier", gb + 2, 1, SAL)
        W.emit(A)
        print("K1 weave overflow:", W.over, file=__import__("sys").stderr)
        A("s_nop 7"); A("s_nop 1")
        if not FINE: P.stamp(A)
        sacc = 7 % 3
        A(f"s_add_u32 s53, s{sSTB}, {7*16384}")
        for q in range(4):
            if not isV:
                rt, j = q//2, q % 2
                srcs = [acc(sacc, rt, 2*j), acc(sacc, rt, 2*j)+2, acc(sacc, rt, 2*j+1), acc(sacc, rt, 2*j+1)+2]
                vo, io = (vSt0 if rt == 0 else vSt1), j*1024
            else:
                t = q
                srcs = [acc(sacc, 0, t), acc(sacc, 0, t)+2, acc(sacc, 1, t), acc(sacc, 1, t)+2]
                vo, io = (vSt0 if t < 2 else vSt1), 2048 + (t % 2)*1024
            p = PK + 4*q
            for i, sreg in enumerate(srcs): A(f"v_cvt_pk_bf16_f32 v{p+i}, v{sreg}, v{sreg+1}")
            A(f"buffer_store_dwordx4 v[{p}:{p+3}], v{vo}, s[{S_KV}:{S_KV+3}], s53 offen offset:{io}{STFLAG}")
        if asmlib.PROF:
            A("s_waitcnt vmcnt(0)"); (None if FINE else P.stamp(A)); A("s_waitcnt lgkmcnt(0)"); P.flush(A, PK)
        A("s_endpgm")
    import copy
    vmK = copy.deepcopy(vm); vmV = copy.deepcopy(vm)
    body(False, vmK)
    A("K1_V:")
    body(True, vmV)
    A("K1_END:"); A("s_endpgm")
    return name, 512, 100, 256
```

```python
from asmlib import *
import asmlib, struct, sys
def f2u(f): return struct.unpack("<I", struct.pack("<f", f))[0]
NEGBIG = f2u(-1e30)
STFLAG = " sc0 sc1"
PREFETCH = True

def O(qt, dt): return (qt*8 + dt)*4
def Lr(qt): return 128 + 4*qt
def KF(kf): return 144 + 4*kf
def VF(vf): return 176 + 4*vf
ONES = 208
def S(st, t, qt): return 16 + st*32 + (t*4 + qt)*4
def Pk(st, qt): return 80 + st*16 + qt*4
def C(t, qt): return 112 + (t*4 + qt)*4
def Q(qt, ks): return 144 + (qt*4 + ks)*4
NEGM = 208
ZV = 212
vL16, vKa, vKb, vDma = 1, 2, 3, 4
vDmaS = 248
T0 = 216
S_KV, S_XN, S_WQ, S_CTX = 16, 20, 24, 28
sW, sI, sHEAD, sHc, sHo, sKVo, sCNT, sT, sT2 = 36, 37, 38, 39, 40, 41, 42, 43, 44
sRTB, sRTA = 45, 46
sU = 47
sFAIL = 48
BQ, AQ = (0, 1), (2, 3)

def koff(kf): return (kf >> 1)*4096 + (kf & 1)*1024
def voff(vf): return (vf >> 1)*4096 + 2048 + (vf & 1)*1024
def lds_ref(x):
    if 0 <= x <= 3: return vKa, x*16384
    if 4 <= x <= 7: return vKb, (x-4)*16384
    if x < 0: return vKb, (x+4)*16384
    return vKa, (x-8)*16384

MASKS = 60
_mlab = [0]
def mask_block(A, qts, urel):
    j0, j1 = qts
    _mlab[0] += 1; n = _mlab[0]
    A(f"s_cmp_eq_u32 s{sW}, {urel}"); A(f"s_cbranch_scc0 K2_MK{n}")
    for r in range(4):
        A(f"v_cndmask_b32 v{C(0,j0)+r}, v{T0}, v{NEGM+j0}, s[{MASKS+2*r}:{MASKS+2*r+1}]")
        A(f"v_cndmask_b32 v{C(1,j1)+r}, v{T0}, v{NEGM+j1}, s[{MASKS+2*r}:{MASKS+2*r+1}]")
        A(f"v_mov_b32 v{C(1,j0)+r}, v{T0}")
    A(f"K2_MK{n}:")
    if urel >= 1:
        A(f"s_cmp_eq_u32 s{sW}, {urel-1}"); A(f"s_cbranch_scc0 K2_ML{n}")
        for r in range(4):
            A(f"v_mov_b32 v{C(0,j0)+r}, v{T0}"); A(f"v_mov_b32 v{C(0,j1)+r}, v{T0}"); A(f"v_mov_b32 v{C(1,j1)+r}, v{T0}")
        A(f"K2_ML{n}:")

def build_slot(s, qk, sm, pv, dma, kread, first_pv=False, vmw=12, extra=None, toggles=False, var=0):
    n_par = (s + 1) & 1
    ms = []
    qk_last = {}
    for t in range(2):
        for ks in range(4):
            for qt in qk:
                d = vr(S(1 - n_par, t, qt), 4)
                c = vr(C(t, qt), 4) if ks == 0 else d
                ms.append(mfma16(d, ar(KF(t*4+ks), 4), vr(Q(qt, ks), 4), c))
            qk_last[t*4+ks] = len(ms) - 1
    nqk = len(ms)
    pv_first = {}
    for qt in pv:
        c = "0" if first_pv else ar(Lr(qt), 4)
        ms.append(mfma16(ar(Lr(qt), 4), ar(ONES, 4), vr(Pk(1 - n_par, qt), 4), c))
    for dt in range(8):
        pv_first[dt] = len(ms)
        for qt in pv:
            c = "0" if first_pv else ar(O(qt, dt), 4)
            ms.append(mfma16(ar(O(qt, dt), 4), ar(VF(dt), 4), vr(Pk(1 - n_par, qt), 4), c))
    W = Weave(ms)
    N = len(ms)
    vg = []
    if pv:
        b, off = lds_ref(s - 2)
        g = 1
        for vf in range(8):
            g = W.put(f"ds_read_b128 {ar(VF(vf),4)}, v{b} offset:{off + voff(vf)}", g, 1, MEM)
            vg.append(g)
            if vf % 2 == 1: g += 2 if N > 40 else 1
    exps = []
    for qt in sm:
        for t in range(2):
            for r in range(4): exps.append(S(n_par, t, qt) + r)
    ne = len(exps)
    eg = []
    g = 0
    for e, reg in enumerate(exps):
        tgt = (e * max(N - 2, 1)) // max(ne, 1)
        g = W.put(f"v_exp_f32 v{reg}, v{reg}", max(g, tgt), 2, VAL)
        eg.append(g); g += 1
    k = 0
    for qi, qt in enumerate(sm):
        for h in range(4):
            t, r = h // 2, (h % 2)*2
            e = qi*8 + t*4 + r
            after = eg[e+1] + 1
            W.put(f"v_cvt_pk_bf16_f32 v{Pk(n_par, qt)+h}, v{S(n_par,t,qt)+r}, v{S(n_par,t,qt)+r+1}", after, 1, VAL)
    if pv:
        W.at("s_waitcnt lgkmcnt(0)", max(pv_first[0] - 1, 0), 1, SAL)
    gb = None
    if vmw is not None:
        g = W.put(f"s_waitcnt vmcnt({vmw})", min(N//4, 17) + 4*var, 1, SAL)
        gb = W.put("s_barrier", g + 2, 1, SAL)
    if dma:
        x = s + 5
        hs = sHo if 4 <= x <= 7 else sHc
        g = W.put(f"s_add_u32 m0, s{hs}, {(x % 4)*16384}", gb + 1, 1, SAL)
        step = max(2, (N - g - 6)//5)
        for i in range(4):
            g = W.put(f"buffer_load_dwordx4 v{vDmaS + s}, s[{S_KV}:{S_KV+3}], s{sKVo} offen offset:{i*1024} lds", g + (1 if i == 0 else step), 2, MEM)
        if toggles: W.tail.append(f"s_add_u32 s{sKVo}, s{sKVo}, 65536")
    if kread:
        b, off = lds_ref(s + 1)
        lo = max(gb + 1 if gb is not None else 0, (pv_first[0] if pv else 0))
        g = lo
        kmax = 0; ktail = False
        for kf in range(8):
            e = max(g, qk_last.get(kf, -1) + 1)
            ins = f"ds_read_b128 {ar(KF(kf),4)}, v{b} offset:{off + koff(kf)}"
            if (not pv and e > N - 5) or ktail: W.tail.append(ins); ktail = True
            else:
                g = W.put(ins, min(e, N-4), 1, MEM, last=N-4); kmax = max(kmax, g)
        if ktail: W.tail.append("s_waitcnt lgkmcnt(0)")
        else: W.at("s_waitcnt lgkmcnt(0)", N - 1, 1, SAL)
    if toggles:
        tg = [(f"v_xor_b32 v{vKa}, 0x10000, v{vKa}", VAL), (f"v_xor_b32 v{vKb}, 0x10000, v{vKb}", VAL),
              (f"s_xor_b32 s{sHc}, s{sHc}, 0x10000", SAL), (f"s_xor_b32 s{sHo}, s{sHo}, 0x10000", SAL)]
        for ins, k in tg:
            if kread and ktail: W.tail.append(ins)
            else: W.put(ins, N - 3, 1, k)
    return W

def build_single(s, dma, kread, vmw, toggles, var=0):
    n_par = (s + 1) & 1
    ms = []
    for t in range(2):
        for ks in range(4):
            for qt in AQ:
                d = vr(S(1 - n_par, t, qt), 4)
                ms.append(mfma16(d, ar(KF(t*4+ks), 4), vr(Q(qt, ks), 4), vr(C(t, qt), 4) if ks == 0 else d))
    for qt in AQ: ms.append(mfma16(ar(Lr(qt), 4), ar(ONES, 4), vr(Pk(1 - n_par, qt), 4), ar(Lr(qt), 4)))
    for dt in range(8):
        for qt in AQ: ms.append(mfma16(ar(O(qt, dt), 4), ar(VF(dt), 4), vr(Pk(1 - n_par, qt), 4), ar(O(qt, dt), 4)))
    W = Weave(ms)
    exps = [S(n_par, t, qt) + r for qt in AQ for t in range(2) for r in range(4)]
    for e, reg in enumerate(exps): W.at(f"v_exp_f32 v{reg}, v{reg}", 2*e, 2, VAL)
    cv = []
    for qt in AQ:
        for h in range(4):
            t, r = h // 2, (h % 2)*2
            cv.append(f"v_cvt_pk_bf16_f32 v{Pk(n_par, qt)+h}, v{S(n_par,t,qt)+r}, v{S(n_par,t,qt)+r+1}")
    bv, offv = lds_ref(s - 2)
    vgaps = [1, 3, 5, 7] if var == 0 else [1, 3, 9, 11]
    gw, gb = (9, 11) if var == 0 else (5, 7)
    for vf in range(8): W.at(f"ds_read_b128 {ar(VF(vf),4)}, v{bv} offset:{offv + voff(vf)}", vgaps[vf//2], 1, MEM)
    cvg = [gw, gb, 27, 27, 29, 29, 32, 33]
    for c_, g in zip(cv, cvg): W.at(c_, g, 1, VAL)
    if vmw is not None:
        W.at(f"s_waitcnt vmcnt({vmw})", gw, 1, SAL); W.at("s_barrier", gb, 1, SAL)
    nk = 0
    if kread:
        bk, offk = lds_ref(s + 1)
        for kf, g in zip(range(8), [15, 15, 17, 17, 21, 21, 23, 23]):
            W.at(f"ds_read_b128 {ar(KF(kf),4)}, v{bk} offset:{offk + koff(kf)}", g, 1, MEM)
        W.at("s_waitcnt lgkmcnt(4)", 17, 1, SAL)
        W.at("s_waitcnt lgkmcnt(0)", 33, 1, SAL)
    else:
        W.at("s_waitcnt lgkmcnt(0)", 17, 1, SAL)
    if dma:
        x = s + 5
        hs = sHo if 4 <= x <= 7 else sHc
        W.at(f"s_add_u32 m0, s{hs}, {(x % 4)*16384}", gb, 1, SAL)
        for i in range(4):
            W.at(f"buffer_load_dwordx4 v{vDmaS + s}, s[{S_KV}:{S_KV+3}], s{sKVo} offen offset:{i*1024} lds", 13 + 6*i, 2, MEM)
    if toggles:
        W.tail += [f"v_xor_b32 v{vKa}, 0x10000, v{vKa}", f"v_xor_b32 v{vKb}, 0x10000, v{vKb}", f"s_xor_b32 s{sHc}, s{sHc}, 0x10000", f"s_xor_b32 s{sHo}, s{sHo}, 0x10000"]
        if dma: W.tail.append(f"s_add_u32 s{sKVo}, s{sKVo}, 65536")
    return W

def emit_group(A, name, qks, sms, pvs, dmas, kreads, masks=None, first_pv=None, vmws=None, loop=None, var=0):
    tot_over = 0
    for s in range(4):
        if qks[s] is None and sms[s] is None and pvs[s] is None: continue
        if masks and masks[s]:
            for (qts, cond) in masks[s]:
                if cond is None: mask_block(A, qts, s)
                else:
                    lab = f"{name}_NM{s}_{qts[0]}"
                    A(f"s_cmp_eq_u32 s{sI}, {cond}"); A(f"s_cbranch_scc0 {lab}")
                    mask_block(A, qts, s)
                    A(f"{lab}:")
            A("s_nop 1")
        if qks[s] == AQ and sms[s] == AQ and pvs[s] == AQ and not (first_pv and first_pv[s]):
            W = build_single(s, dmas[s], kreads[s], (vmws[s] if vmws else 12), s == 3, var)
        else:
          W = build_slot(s, qks[s] or (), sms[s] or (), pvs[s] or (), dmas[s], kreads[s],
                       first_pv=bool(first_pv and first_pv[s]), vmw=(vmws[s] if vmws else 12), toggles=(s == 3), var=var)
        W.emit(A); tot_over += W.over
    print(f"K2 group {name}: overflow {tot_over}", file=sys.stderr)

def epilogue(A, qts, srt):
    A("s_nop 7")
    for qi, qt in enumerate(qts):
        inv = T0 + 1 + qi
        A(f"v_accvgpr_read_b32 v{inv}, a{Lr(qt)}")
        A("s_nop 0")
        A(f"v_cmp_nle_f32 vcc, v{inv}, v{T0+4}")
        A("s_nop 3")
        A(f"s_or_b64 s[{sFAIL}:{sFAIL+1}], s[{sFAIL}:{sFAIL+1}], vcc")
        A(f"v_rcp_f32 v{inv}, v{inv}")
    for qi, qt in enumerate(qts):
        inv = T0 + 1 + qi
        inv2 = T0 + 6
        A(f"v_mov_b32 v{inv2}, v{inv}"); A(f"v_mov_b32 v{inv2+1}, v{inv}")
        A(f"s_add_u32 s{sT}, s{srt}, {qi}"); A(f"s_lshl_b32 s{sT}, s{sT}, 17")
        A(f"s_lshl_b32 s{sT2}, s{sHEAD}, 12"); A(f"s_add_u32 s{sT}, s{sT}, s{sT2}")
        for ks in range(4):
            tb = T0 + 8 + (ks % 2)*12
            for h in range(2):
                for r in range(4):
                    A(f"v_accvgpr_read_b32 v{tb+4*h+r}, a{O(qt, 2*ks+h)+r}")
            for j in range(4): A(f"v_pk_mul_f32 v[{tb+2*j}:{tb+2*j+1}], v[{tb+2*j}:{tb+2*j+1}], v[{inv2}:{inv2+1}]")
            for j in range(4): A(f"v_cvt_pk_bf16_f32 v{tb+8+j}, v{tb+2*j}, v{tb+2*j+1}")
            A(f"buffer_store_dwordx4 v[{tb+8}:{tb+11}], v{vL16}, s[{S_CTX}:{S_CTX+3}], s{sT} offen offset:{ks*1024}{STFLAG}")

def gen_k2(A):
    name = "k2_kernel"
    kernel_head(A, name)
    P = Prof(1)
    A("s_cmp_ge_u32 s2, 256"); A("s_cbranch_scc1 K2_END")
    P.stamp(A)
    A("s_load_dwordx2 s[4:5], s[0:1], 16"); A("s_load_dwordx2 s[12:13], s[0:1], 96")
    A("s_load_dwordx2 s[6:7], s[0:1], 40"); A("s_load_dwordx4 s[8:11], s[0:1], 56"); A("s_load_dwordx2 s[14:15], s[0:1], 72")
    A("v_and_b32 v5, 63, v0"); A(f"v_lshlrev_b32 v{vL16}, 4, v5")
    A("v_lshrrev_b32 v6, 6, v0"); A("s_nop 0"); A(f"v_readfirstlane_b32 s{sW}, v6")
    A(f"s_lshr_b32 s{sI}, s2, 5")
    A(f"s_and_b32 s{sT}, s2, 7"); A(f"s_lshl_b32 s{sT}, s{sT}, 2"); A(f"s_lshr_b32 s{sT2}, s2, 3"); A(f"s_and_b32 s{sT2}, s{sT2}, 3")
    A(f"s_add_u32 s{sHEAD}, s{sT}, s{sT2}")
    A(f"s_lshl_b32 s{sT}, s{sW}, 1")
    A(f"s_lshl_b32 s{sRTB}, s{sI}, 3"); A(f"s_add_u32 s{sRTB}, s{sRTB}, s{sT}")
    A(f"s_sub_u32 s{sRTA}, 15, s{sI}"); A(f"s_lshl_b32 s{sRTA}, s{sRTA}, 3"); A(f"s_add_u32 s{sRTA}, s{sRTA}, s{sT}")
    A("s_waitcnt lgkmcnt(0)")
    srd(A, S_WQ, 4, 5, 4 << 20)
    srd(A, S_XN, 12, 13, 2 << 20)
    A(f"s_add_u32 s{S_KV}, s12, {WS_KV}"); A(f"s_addc_u32 s{S_KV+1}, s13, 0"); A(f"s_mov_b32 s{S_KV+2}, {32<<20}"); A(f"s_mov_b32 s{S_KV+3}, 0x00020000")
    A(f"s_add_u32 s{S_CTX}, s12, {WS_CTX}"); A(f"s_addc_u32 s{S_CTX+1}, s13, 0"); A(f"s_mov_b32 s{S_CTX+2}, {16<<20}"); A(f"s_mov_b32 s{S_CTX+3}, 0x00020000")
    vm = VM()
    vWq = 8
    A("v_lshrrev_b32 v6, 4, v5"); A("v_and_b32 v7, 15, v5")
    A(f"v_lshrrev_b32 v{T0}, 1, v7")
    A(f"v_and_b32 v{T0+1}, 1, v7"); A(f"v_lshlrev_b32 v{T0+1}, 4, v{T0+1}")
    A(f"s_lshl_b32 s{sT}, s{sHEAD}, 8"); A(f"s_lshl_b32 s{sT2}, s{sW}, 18"); A(f"s_add_u32 s{sT}, s{sT}, s{sT2}")
    A(f"v_add_u32 v{T0+1}, s{sT}, v{T0+1}")
    A(f"v_lshl_add_u32 v{T0+1}, v6, 13, v{T0+1}")
    for j in range(4):
        A(f"v_or_b32 v{T0+2}, {((j >> 1) & 1) << 2}, v6")
        A(f"v_xor_b32 v{T0+2}, v{T0+2}, v{T0}")
        A(f"v_lshl_add_u32 v{vWq+j}, v{T0+2}, 5, v{T0+1}")
        if j: A(f"v_add_u32 v{vWq+j}, {j*32768 - j*1024}, v{vWq+j}")
    sM0 = 50
    A(f"s_lshl_b32 s{sM0}, s{sW}, 13")
    def wq_dma(c):
        r = []
        for m in range(8):
            if m % 4 == 0:
                mq = m // 4
                r.append((f"s_add_u32 m0, s{sM0}, {c*32768 + mq*4096}", SAL, None))
                r.append((f"s_mov_b32 s51, {(c*128 + 16*mq)*8192}", SAL, None))
            j = m % 4
            r.append((f"buffer_load_dwordx4 v{vWq+j}, s[{S_WQ}:{S_WQ+3}], s51 offen offset:{j*1024} lds", MEM, f"wq{c}"))
        return r
    def xn_reg(c, qt, ksl): return (c % 3)*64 + (qt*4 + ksl)*4
    def xn_load(c):
        r = []
        for qt in range(4):
            srt = sRTB if qt < 2 else sRTA
            r.append((f"s_add_u32 s52, s{srt}, {qt % 2}", SAL, None)); r.append(("s_lshl_b32 s52, s52, 14", SAL, None)); r.append((f"s_add_u32 s52, s52, {c*4096}", SAL, None))
            for ksl in range(4):
                r.append((f"buffer_load_dwordx4 {ar(xn_reg(c, qt, ksl), 4)}, v{vL16}, s[{S_XN}:{S_XN+3}], s52 offen offset:{ksl*1024}", MEM, f"xn{c}"))
        return r
    def plain(lst):
        for ins, k, tag in lst:
            A(ins)
            if tag: vm.issue(tag)
    def woven(W, lst, g, step=2):
        for ins, k, tag in lst:
            if k == SAL: g = W.put(ins, g, 1, SAL)
            else:
                g = W.put(ins, g + 1, 2, MEM); vm.issue(tag); g += step - 1
        return g
    plain(wq_dma(0)); plain(xn_load(0))
    RP = 131072
    sGW, sRPL, sD1, sD2, sVAR = 54, 55, 64, 65, 66
    vP1024, vP2752, vTrP, vTrN = 12, 13, 14, 15
    A(f"s_lshl_b32 s{sGW}, s2, 2"); A(f"s_add_u32 s{sGW}, s{sGW}, s{sW}")
    A(f"s_lshl_b32 s{sRPL}, s{sW}, 13"); A(f"s_add_u32 s{sRPL}, s{sRPL}, {RP}")
    A(f"v_lshrrev_b32 v{T0}, 3, v5"); A(f"v_and_b32 v{T0+1}, 7, v5"); A(f"v_lshlrev_b32 v{T0+1}, 4, v{T0+1}")
    A(f"v_lshl_add_u32 v{vP1024}, v{T0}, 10, v{T0+1}")
    A(f"s_mov_b32 s{sT}, 2752"); A(f"v_mul_lo_u32 v{T0}, v{T0}, s{sT}"); A(f"v_add_u32 v{vP2752}, v{T0}, v{T0+1}")
    A(f"v_lshrrev_b32 v{T0}, 2, v7"); A(f"v_and_b32 v{T0+1}, 3, v7"); A(f"v_lshlrev_b32 v{T0+1}, 3, v{T0+1}")
    A(f"v_lshl_add_u32 v{T0+2}, v6, 2, v{T0}"); A(f"v_lshl_add_u32 v{vTrP}, v{T0+2}, 7, v{T0+1}"); A(f"v_add_u32 v{vTrP}, s{sRPL}, v{vTrP}")
    A(f"v_lshl_add_u32 v{T0+2}, v6, 3, v{T0}"); A(f"v_lshl_add_u32 v{vTrN}, v{T0+2}, 7, v{T0+1}"); A(f"v_add_u32 v{vTrN}, s{sRPL}, v{vTrN}")
    def rp_dma(srd_s, voff, pitch, ssrc, slot):
        for m in range(4):
            A(f"s_add_u32 m0, s{sRPL}, {slot*4096 + m*1024}")
            A(f"s_add_u32 s67, s{ssrc}, {m*8*pitch}")
            A(f"buffer_load_dwordx4 v{voff}, s[{srd_s}:{srd_s+3}], s67 offen lds"); vm.issue("rp")
    def set_srd(s0, lo, nbytes):
        A(f"s_mov_b32 s{s0}, s{lo}"); A(f"s_mov_b32 s{s0+1}, s{lo+1}"); A(f"s_mov_b32 s{s0+2}, {nbytes}"); A(f"s_mov_b32 s{s0+3}, 0x00020000")
    def wd_params(sb, sdst):
        A(f"s_mul_hi_u32 s{sT}, s{sb}, {(1 << 32)//43 + 1}")
        A(f"s_mul_i32 s{sT2}, s{sT}, 43"); A(f"s_sub_u32 s{sT2}, s{sb}, s{sT2}")
        A(f"s_lshl_b32 s68, s{sT2}, 15"); A(f"s_lshl_b32 s69, s{sT}, 7"); A("s_add_u32 s68, s68, s69")
        A(f"s_mul_i32 s{sdst}, s{sT}, 44"); A(f"s_add_u32 s{sdst}, s{sdst}, s{sT2}"); A(f"s_lshl_b32 s{sdst}, s{sdst}, 12"); A(f"s_add_u32 s{sdst}, s{sdst}, {WS_WDF - WS_WOF}")
    def rp_issue():
        set_srd(56, 6, 4 << 20)
        A(f"s_and_b32 s{sT}, s{sGW}, 127"); A(f"s_lshl_b32 s{sT}, s{sT}, 15"); A(f"s_lshr_b32 s{sT2}, s{sGW}, 7"); A(f"s_lshl_b32 s{sT2}, s{sT2}, 7"); A(f"s_add_u32 s68, s{sT}, s{sT2}")
        rp_dma(56, vP1024, 1024, 68, 0)
        A(f"s_lshl_b32 s{sD1}, s{sGW}, 12"); A(f"s_add_u32 s{sD1}, s{sD1}, {WS_WOF - WS_WOF}")
        A(f"s_cmp_lt_u32 s{sGW}, 704"); A("s_cbranch_scc0 K2_RP_WD")
        A(f"s_and_b32 s{sT}, s{sGW}, 1"); A(f"s_cmp_eq_u32 s{sT}, 0")
        A("s_cselect_b32 s60, s8, s10"); A("s_cselect_b32 s61, s9, s11"); A(f"s_mov_b32 s62, {512*2752}"); A("s_mov_b32 s63, 0x00020000")
        A(f"s_lshr_b32 s{sT}, s{sGW}, 1"); A(f"s_and_b32 s{sT}, s{sT}, 15"); A(f"s_mul_i32 s{sT}, s{sT}, {32*2752}")
        A(f"s_lshr_b32 s{sT2}, s{sGW}, 5"); A(f"s_lshl_b32 s{sT2}, s{sT2}, 7"); A(f"s_add_u32 s68, s{sT}, s{sT2}")
        vm2 = len(vm.ops)
        rp_dma(60, vP2752, 2752, 68, 1)
        del vm.ops[vm2:]
        A(f"s_lshl_b32 s{sD2}, s{sGW}, 12"); A(f"s_add_u32 s{sD2}, s{sD2}, {WS_WGF - WS_WOF}")
        A(f"s_mov_b32 s{sVAR}, 0"); A("s_branch K2_RP_J")
        A("K2_RP_WD:")
        set_srd(60, 14, 1376*1024)
        A(f"s_sub_u32 s70, s{sGW}, 704")
        wd_params(70, sD2)
        rp_dma(60, vP1024, 1024, 68, 1)
        A(f"s_mov_b32 s{sVAR}, 1")
        A("K2_RP_J:")
        A(f"s_add_u32 s56, s12, {WS_WOF}"); A("s_addc_u32 s57, s13, 0"); A(f"s_mov_b32 s58, {WS_WGF + 22*16*8192 - WS_WOF}"); A("s_mov_b32 s59, 0x00020000")

    def rp_out(vtr, jstride, slot, sdst):
        R = T0 + 24
        for t in range(4):
            for j in range(2):
                A(f"ds_read_b64_tr_b16 v[{R+4*t+2*j}:{R+4*t+2*j+1}], v{vtr} offset:{slot*4096 + j*jstride + t*32}")
        A("s_waitcnt lgkmcnt(0)")
        for t in range(4):
            A(f"buffer_store_dwordx4 v[{R+4*t}:{R+4*t+3}], v{vL16}, s[56:59], s{sdst} offen offset:{t*1024}{STFLAG}"); vm.issue("rps")
    def repack_finish():
        A(vm.wait("rp"))
        rp_out(vTrP, 2048, 0, sD1)
        A(f"s_cmp_eq_u32 s{sVAR}, 0"); A("s_cbranch_scc0 K2_RPF_WD")
        n0 = len(vm.ops)
        A("s_nop 1"); rp_out(vTrN, 512, 1, sD2); del vm.ops[n0:]
        A("s_branch K2_RPF_J"); A("K2_RPF_WD:")
        A("s_nop 1"); rp_out(vTrP, 2048, 1, sD2)
        A("K2_RPF_J:")
    plain(wq_dma(1)); plain(xn_load(1))
    vTr = 224
    A(f"v_lshrrev_b32 v{T0}, 2, v7")
    A(f"v_and_b32 v{T0+1}, 1, v6"); A(f"v_lshl_or_b32 v{T0+1}, v{T0+1}, 2, v{T0}")
    A(f"v_lshl_add_u32 v{T0+2}, v6, 3, v{T0}"); A(f"v_lshlrev_b32 v{T0+2}, 8, v{T0+2}")
    A(f"v_and_b32 v{T0+3}, 3, v7"); A(f"v_lshl_add_u32 v{T0+2}, v{T0+3}, 3, v{T0+2}")
    for dt in range(8):
        A(f"v_xor_b32 v{T0+3}, {dt}, v{T0+1}")
        A(f"v_lshl_add_u32 v{vTr+dt}, v{T0+3}, 5, v{T0+2}")
    A(f"s_lshl_b32 s{sT}, s{sW}, 12")
    A(f"v_add_u32 v{vDma}, s{sT}, v{vL16}")
    A(f"s_mov_b32 s{sHc}, s{sT}"); A(f"s_add_u32 s{sHo}, s{sT}, 0x10000")
    A(f"v_mov_b32 v{vKa}, v{vL16}"); A(f"v_add_u32 v{vKb}, 0x10000, v{vL16}")
    A(f"s_lshl_b32 s{sKVo}, s{sHEAD}, 20")
    A(f"s_mov_b64 s[{sFAIL}:{sFAIL+1}], 0")
    def kv_dma(u):
        r = [(f"s_add_u32 m0, s{sHc}, {u*16384}", SAL, None), (f"s_add_u32 s53, s{sKVo}, {u*16384}", SAL, None)]
        for i in range(4):
            r.append((f"buffer_load_dwordx4 v{vDma}, s[{S_KV}:{S_KV+3}], s53 offen offset:{i*1024} lds", MEM, f"u{u}"))
        return r
    QA = 16
    def qa(dt, qt): return QA + (dt*4 + qt)*4
    def wf(par, dt): return 192 + par*32 + dt*4
    def tr(c, ksl, dt, j, par):
        d = wf(par, dt) + 2*j
        return f"ds_read_b64_tr_b16 a[{d}:{d+1}], v{vTr+dt} offset:{(c % 2)*32768 + ksl*8192 + j*1024}"
    P.stamp(A)
    step = 0
    for c in range(4):
        A(f"s_waitcnt vmcnt({min(63, vm.count_after(f'xn{c}'), vm.count_after(f'wq{c}'))})")
        A("s_barrier")
        if c == 2:
            for dt in range(8): A(f"v_add_u32 v{vTr+dt}, 0x10000, v{vTr+dt}")
            rp_issue()
        for dt in range(8):
            for j in range(2): A(tr(c, 0, dt, j, step % 2))
        A("s_waitcnt lgkmcnt(0)")
        pend = {0: wq_dma(2) + xn_load(2) + wq_dma(3), 1: kv_dma(0) + kv_dma(1) + xn_load(3), 2: kv_dma(2) + kv_dma(3), 3: kv_dma(4) + kv_dma(5)}[c]
        groups = [[], [], [], []]
        nmem = sum(1 for x in pend if x[1] == MEM); per = -(-nmem // 4); cnt = 0
        cur = []
        for it in pend:
            cur.append(it)
            if it[1] == MEM:
                groups[min(cnt // per, 3)] += cur; cur = []; cnt += 1
        for ksl in range(4):
            par = step % 2
            ms = [mfma16(vr(qa(dt, qt), 4), ar(wf(par, dt), 4), ar(xn_reg(c, qt, ksl), 4), "0" if step == 0 else vr(qa(dt, qt), 4))
                  for dt in range(8) for qt in range(4)]
            W = Weave(ms)
            g = 0
            if ksl < 3:
                for dt in range(8):
                    for j in range(2): g = W.put(tr(c, ksl+1, dt, j, 1 - par), g, 1, MEM)
                W.at("s_waitcnt lgkmcnt(0)", 31, 1, SAL)
            woven(W, groups[ksl], g + 1, 2)
            assert W.over == 0
            W.emit(A)
            step += 1
    repack_finish()
    P.stamp(A)
    A("s_nop 7")
    for qt in range(4):
        for ks in range(4):
            a0, a1 = qa(2*ks, qt), qa(2*ks+1, qt)
            A(f"v_cvt_pk_bf16_f32 v{Q(qt,ks)}, v{a0}, v{a0+1}"); A(f"v_cvt_pk_bf16_f32 v{Q(qt,ks)+1}, v{a0+2}, v{a0+3}")
            A(f"v_cvt_pk_bf16_f32 v{Q(qt,ks)+2}, v{a1}, v{a1+1}"); A(f"v_cvt_pk_bf16_f32 v{Q(qt,ks)+3}, v{a1+2}, v{a1+3}")
    A(f"v_mov_b32 v{T0}, {NEGBIG:#x}")
    A(f"v_mov_b32 v{T0+4}, {f2u(2.0**32):#x}")
    A(f"v_mov_b32 v{T0+1}, 0x3f803f80")
    for r in range(4): A(f"v_accvgpr_write_b32 a{ONES+r}, v{T0+1}")
    A(f"v_lshlrev_b32 v{T0+2}, 2, v6"); A(f"v_sub_u32 v{T0+2}, v7, v{T0+2}")
    for r in range(4): A(f"v_cmp_le_i32 s[{MASKS+2*r}:{MASKS+2*r+1}], {r}, v{T0+2}")
    for qt in range(4):
        A(f"v_mov_b32 v{NEGM+qt}, 0")
        for t in range(2):
            for r in range(4): A(f"v_mov_b32 v{C(t,qt)+r}, 0")
    A(vm.wait("u1")); A("s_barrier")
    for kf in range(8): A(f"ds_read_b128 {ar(KF(kf),4)}, v{vKa} offset:{koff(kf)}")
    A(f"s_cmp_eq_u32 s{sI}, 0"); A("s_cbranch_scc0 K2_NM0")
    mask_block(A, BQ, 0)
    A("K2_NM0:")
    A("s_waitcnt lgkmcnt(0)")
    for t in range(2):
        for ks in range(4):
            for qt in range(4):
                d = vr(S(0, t, qt), 4)
                A(mfma16(d, ar(KF(t*4+ks), 4), vr(Q(qt, ks), 4), vr(C(t, qt), 4) if ks == 0 else d))
    for kf in range(8): A(f"ds_read_b128 {ar(KF(kf),4)}, v{vKa} offset:{16384 + koff(kf)}")
    A("s_nop 7")
    for qt in range(4):
        m = NEGM + qt; a, b = S(0, 0, qt), S(0, 1, qt)
        A(f"v_max3_f32 v{m}, v{a}, v{a+1}, v{a+2}"); A(f"v_max3_f32 v{m}, v{m}, v{a+3}, v{b}")
        A(f"v_max3_f32 v{m}, v{m}, v{b+1}, v{b+2}"); A(f"v_max_f32 v{m}, v{m}, v{b+3}")
    for sw in ("v_permlane16_swap_b32", "v_permlane32_swap_b32"):
        for qt in range(4): A(f"v_mov_b32 v{T0+8+qt}, v{NEGM+qt}")
        A("s_nop 1")
        for qt in range(4): A(f"{sw} v{NEGM+qt}, v{T0+8+qt}")
        A("s_nop 1")
        for qt in range(4): A(f"v_max_f32 v{NEGM+qt}, v{NEGM+qt}, v{T0+8+qt}")
    for qt in range(4):
        A(f"v_sub_f32 v{NEGM+qt}, 0, v{NEGM+qt}")
    for qt in range(4):
        for t in range(2):
            for r in range(4):
                A(f"v_add_f32 v{S(0,t,qt)+r}, v{S(0,t,qt)+r}, v{NEGM+qt}")
                A(f"v_mov_b32 v{C(t,qt)+r}, v{NEGM+qt}")
    A(f"s_cmp_eq_u32 s{sI}, 0"); A("s_cbranch_scc0 K2_NM0b")
    mask_block(A, BQ, 0)
    A("K2_NM0b:")
    A("s_waitcnt lgkmcnt(0)")
    P.stamp(A)
    ALL = (0, 1, 2, 3)
    w0 = vm.count_after("u2");
    for _ in range(4): vm.issue("u6")
    w1 = vm.count_after("u3")
    for _ in range(4): vm.issue("u7")
    w2 = vm.count_after("u4")
    A(f"s_add_u32 s{sKVo}, s{sKVo}, {4*16384}")
    for s_ in range(4): A(f"v_add_u32 v{vDmaS+s_}, {(s_+1)*16384}, v{vDma}")
    emit_group(A, "first", [None, ALL, ALL, ALL], [None, ALL, ALL, ALL], [None, None, ALL, ALL],
               [0, 1, 1, 1], [0, 1, 1, 1], masks=[None, [(BQ, 0)], [(BQ, 0)], [(BQ, 0)]],
               first_pv=[0, 0, 1, 0], vmws=[None, w0, w1, w2])
    print("first waits", w0, w1, w2, file=sys.stderr)
    A(f"s_cmp_lt_u32 s{sI}, 2"); A("s_cbranch_scc1 K2_DUALM")
    A(f"s_sub_u32 s{sCNT}, s{sI}, 1")
    A(f"s_bitcmp1_b32 s{sW}, 0"); A("s_cbranch_scc1 K2_DUAL_B")
    A(".p2align 6")
    A("K2_DUAL:")
    emit_group(A, "dual", [ALL]*4, [ALL]*4, [ALL]*4, [1]*4, [1]*4)
    A(f"s_sub_u32 s{sCNT}, s{sCNT}, 1"); A(f"s_cmp_lg_u32 s{sCNT}, 0"); A("s_cbranch_scc1 K2_DUAL")
    A("s_branch K2_DUALM")
    A(".p2align 6")
    A("K2_DUAL_B:")
    emit_group(A, "dualb", [ALL]*4, [ALL]*4, [ALL]*4, [1]*4, [1]*4, var=1)
    A(f"s_sub_u32 s{sCNT}, s{sCNT}, 1"); A(f"s_cmp_lg_u32 s{sCNT}, 0"); A("s_cbranch_scc1 K2_DUAL_B")
    A("K2_DUALM:")
    A(f"s_cmp_eq_u32 s{sI}, 0"); A("s_cbranch_scc1 K2_TRANS")
    emit_group(A, "dualm", [ALL]*4, [ALL]*4, [ALL]*4, [1]*4, [1]*4, masks=[[(BQ, None)]]*4)
    A("K2_TRANS:")
    P.stamp(A)
    emit_group(A, "trans", [AQ]*4, [ALL, AQ, AQ, AQ], [ALL, ALL, AQ, AQ], [1]*4, [1]*4, masks=[[(AQ, 7)]]*4)
    epilogue(A, BQ, sRTB)
    A(f"s_cmp_eq_u32 s{sI}, 7"); A("s_cbranch_scc1 K2_DRAIN")
    A(f"s_lshl_b32 s{sCNT}, s{sI}, 1"); A(f"s_sub_u32 s{sCNT}, 13, s{sCNT}")
    A(f"s_bitcmp1_b32 s{sW}, 0"); A("s_cbranch_scc1 K2_SINGLE_B")
    A(".p2align 6")
    A("K2_SINGLE:")
    emit_group(A, "single", [AQ]*4, [AQ]*4, [AQ]*4, [1]*4, [1]*4)
    A(f"s_sub_u32 s{sCNT}, s{sCNT}, 1"); A(f"s_cmp_lg_u32 s{sCNT}, 0"); A("s_cbranch_scc1 K2_SINGLE")
    A("s_branch K2_SINGLEM")
    A(".p2align 6")
    A("K2_SINGLE_B:")
    emit_group(A, "singleb", [AQ]*4, [AQ]*4, [AQ]*4, [1]*4, [1]*4, var=1)
    A(f"s_sub_u32 s{sCNT}, s{sCNT}, 1"); A(f"s_cmp_lg_u32 s{sCNT}, 0"); A("s_cbranch_scc1 K2_SINGLE_B")
    A("K2_SINGLEM:")
    emit_group(A, "singlem", [AQ]*4, [AQ]*4, [AQ]*4, [0]*4, [1, 1, 1, 0], masks=[[(AQ, None)]]*4, vmws=[12, 8, 4, None])
    A("K2_DRAIN:")
    emit_group(A, "drain", [None]*4, [AQ, None, None, None], [AQ, AQ, None, None], [0]*4, [0]*4, vmws=[None]*4)
    P.stamp(A)
    epilogue(A, AQ, sRTA)
    A(f"s_sub_u32 s70, s{sGW}, 896"); A("s_cmp_lt_u32 s70, 24"); A("s_cbranch_scc0 K2_RP3_SKIP")
    A("s_add_u32 s70, s70, 320")
    set_srd(60, 14, 1376*1024)
    wd_params(70, sD2)
    rp_dma(60, vP1024, 1024, 68, 1)
    A("s_waitcnt vmcnt(0)")
    rp_out(vTrP, 2048, 1, sD2)
    A("K2_RP3_SKIP:")
    if asmlib.PROF:
        A("s_waitcnt vmcnt(0)"); P.stamp(A); A("s_waitcnt lgkmcnt(0)"); P.flush(A, T0+36)
    A("K2_END:"); A("s_endpgm")
    return name, 512, 100, 256
```

```python
from asmlib import *
import asmlib, struct, sys
def f2u(f): return struct.unpack("<I", struct.pack("<f", f))[0]
STFLAG = " sc0 sc1"

def gen_ksplit(A, kind):
    k3 = kind == "k3"
    name = f"{kind}_kernel"; L = kind.upper()
    kernel_head(A, name)
    P = Prof(2 if k3 else 4)
    S_A, S_W, S_R, S_O1, S_O2, S_ST = 16, 20, 24, 28, 32, 56
    sW, sRB, sCB, sT, sT2, sKS, sAo, sWo, sM0, sCNT = 36, 37, 38, 39, 40, 41, 42, 43, 44, 45
    NKS = 128 if k3 else 44
    APITCH = NKS*1024
    vL, vA, vW, vTr, vRes = 1, 2, 6, 10, 14
    import os
    WINC = 4096 if os.environ.get('HACKW') else 32768
    ND = 8
    ACC = 24
    AF = 88
    WF = 216
    T = 60
    RED = 0
    def acc(t, rt): return ACC + (t*4 + rt)*4
    A(f"s_cmp_ge_u32 s2, 256"); A(f"s_cbranch_scc1 {L}_END")
    P.stamp(A)
    A(f"s_load_dwordx2 s[4:5], s[0:1], {40 if k3 else 72}")
    A("s_load_dwordx2 s[12:13], s[0:1], 96")
    A(f"s_load_dwordx2 s[6:7], s[0:1], {0 if k3 else 80}")
    A(f"v_and_b32 v{vL}, 63, v0")
    A("v_lshrrev_b32 v2, 6, v0"); A("s_nop 0"); A(f"v_readfirstlane_b32 s{sW}, v2")
    A(f"s_lshr_b32 s{sT}, s2, 3"); A(f"s_and_b32 s{sCB}, s{sT}, 7"); A(f"s_lshr_b32 s{sT}, s{sT}, 3")
    A(f"s_and_b32 s{sRB}, s2, 7"); A(f"s_lshl_b32 s{sRB}, s{sRB}, 2"); A(f"s_add_u32 s{sRB}, s{sRB}, s{sT}")
    A("s_waitcnt lgkmcnt(0)")
    woff = WS_WOF if k3 else WS_WDF
    A(f"s_add_u32 s{S_W}, s12, {woff}"); A(f"s_addc_u32 s{S_W+1}, s13, 0"); A(f"s_mov_b32 s{S_W+2}, {8*NKS*4096}"); A(f"s_mov_b32 s{S_W+3}, 0x00020000")
    aoff = WS_CTX if k3 else WS_HH
    A(f"s_add_u32 s{S_A}, s12, {aoff}"); A(f"s_addc_u32 s{S_A+1}, s13, 0"); A(f"s_mov_b32 s{S_A+2}, {128*APITCH}"); A(f"s_mov_b32 s{S_A+3}, 0x00020000")
    if k3:
        srd(A, S_R, 6, 7, 2 << 20)
        A(f"s_add_u32 s{S_O1}, s12, {WS_HR}"); A(f"s_addc_u32 s{S_O1+1}, s13, 0"); A(f"s_mov_b32 s{S_O1+2}, {2<<20}"); A(f"s_mov_b32 s{S_O1+3}, 0x00020000")
        A(f"s_add_u32 s{S_O2}, s12, {WS_H}"); A(f"s_addc_u32 s{S_O2+1}, s13, 0"); A(f"s_mov_b32 s{S_O2+2}, {2<<20}"); A(f"s_mov_b32 s{S_O2+3}, 0x00020000")
        A(f"s_add_u32 s{S_ST}, s12, {WS_ST}"); A(f"s_addc_u32 s{S_ST+1}, s13, 0"); A(f"s_mov_b32 s{S_ST+2}, {2048*64}"); A(f"s_mov_b32 s{S_ST+3}, 0x00020000")
    else:
        A(f"s_add_u32 s{S_R}, s12, {WS_HR}"); A(f"s_addc_u32 s{S_R+1}, s13, 0"); A(f"s_mov_b32 s{S_R+2}, {2<<20}"); A(f"s_mov_b32 s{S_R+3}, 0x00020000")
        srd(A, S_O1, 6, 7, 2 << 20)
    A(f"v_lshlrev_b32 v{vA}, 4, v{vL}")
    for rt in range(1, 4): A(f"v_add_u32 v{vA+rt}, {rt*APITCH}, v{vA}")
    if k3: A(f"s_lshl_b32 s{sKS}, s{sW}, 5")
    else: A(f"s_mul_i32 s{sKS}, s{sW}, 11")
    A(f"s_lshl_b32 s{sT}, s{sRB}, 2"); A(f"s_mul_i32 s{sAo}, s{sT}, {APITCH}"); A(f"s_lshl_b32 s{sT}, s{sKS}, 10"); A(f"s_add_u32 s{sAo}, s{sAo}, s{sT}")
    A(f"s_mul_i32 s{sWo}, s{sCB}, {NKS}"); A(f"s_add_u32 s{sWo}, s{sWo}, s{sKS}"); A(f"s_lshl_b32 s{sWo}, s{sWo}, 12")
    def af(st, rt): return st*32 + rt*4
    def wfr(st, t): return st*32 + 16 + t*4
    def loads(st):
        r = []
        for t in range(4): r.append(f"buffer_load_dwordx4 {ar(wfr(st, t), 4)}, v{vA}, s[{S_W}:{S_W+3}], s{sWo} offen offset:{t*1024}")
        for rt in range(4): r.append(f"buffer_load_dwordx4 {ar(af(st, rt), 4)}, v{vA+rt}, s[{S_A}:{S_A+3}], s{sAo} offen")
        return r
    def incs(): return [f"s_add_u32 s{sWo}, s{sWo}, 4096", f"s_add_u32 s{sAo}, s{sAo}, 1024"]
    for st in range(ND-1):
        A(loads(st)); A(incs())
    A(f"v_lshrrev_b32 v22, 3, v0"); A(f"v_and_b32 v23, 7, v0")
    A(f"v_lshlrev_b32 v{T+4}, 10, v22"); A(f"v_lshl_add_u32 v{T+4}, v23, 4, v{T+4}")
    A(f"s_lshl_b32 s{sT}, s{sRB}, 16"); A(f"s_lshl_b32 s{sT2}, s{sCB}, 7"); A(f"s_add_u32 s46, s{sT}, s{sT2}")
    A(f"s_add_u32 s47, s46, 32768")
    A(f"buffer_load_dwordx4 {vr(vRes,4)}, v{T+4}, s[{S_R}:{S_R+3}], s46 offen")
    A(f"buffer_load_dwordx4 {vr(vRes+4,4)}, v{T+4}, s[{S_R}:{S_R+3}], s47 offen")
    P.stamp(A)
    def step2(s_, first, do_load, vmw):
        st = s_ % ND
        ms = [mfma16(vr(acc(t, rt), 4), ar(wfr(st, t), 4), ar(af(st, rt), 4), "0" if first else vr(acc(t, rt), 4)) for rt in range(4) for t in range(4)]
        A(f"s_waitcnt vmcnt({vmw})")
        W = Weave(ms)
        if do_load:
            g = 0
            for ins in loads((s_ - 1) % ND): g = W.put(ins, g, 2, MEM) + 1
            for ins in incs(): g = W.put(ins, g, 1, SAL)
        W.emit(A)
    n = 32 if k3 else 11
    full = 8*(ND-2)
    def vm_for(s_):
        last_issued = min(n - 1, s_ + ND - 2)
        return 8*(last_issued - s_) + (2 if s_ <= ND - 2 else 0)
    if k3:
        for s_ in range(ND): step2(s_, s_ == 0, True, vm_for(s_))
        A(f"s_mov_b32 s{sCNT}, 2")
        A(f"{L}_LOOP:")
        for s_ in range(ND): step2(ND + s_, False, True, full)
        A(f"s_sub_u32 s{sCNT}, s{sCNT}, 1"); A(f"s_cmp_lg_u32 s{sCNT}, 0"); A(f"s_cbranch_scc1 {L}_LOOP")
        for s_ in range(3*ND, 4*ND): step2(s_, False, s_ + ND - 1 < n, vm_for(s_))
    else:
        for s_ in range(n):
            if s_ == n - 1:
                A(f"s_cmp_eq_u32 s{sW}, 3"); A(f"s_cbranch_scc1 {L}_SKIP")
            step2(s_, s_ == 0, s_ + ND - 1 < n, vm_for(s_))
        A(f"{L}_SKIP:")
    P.stamp(A)
    A("s_waitcnt lgkmcnt(0)"); A("s_barrier")
    T = AF
    A(f"v_mov_b32 v{T}, v22"); A(f"v_mov_b32 v{T+1}, v23")
    A(f"v_lshlrev_b32 v{T+4}, 10, v22"); A(f"v_lshl_add_u32 v{T+4}, v23, 4, v{T+4}")
    A(f"v_and_b32 v{T+5}, 15, v{vL}"); A(f"v_lshrrev_b32 v{T+6}, 4, v{vL}")
    A(f"s_mul_i32 s{sT}, s{sW}, 17408"); A(f"s_add_u32 s{sT}, s{sT}, {RED}")
    A(f"v_mul_u32_u24 v{T+5}, 272, v{T+5}"); A(f"v_lshl_add_u32 v{T+5}, v{T+6}, 4, v{T+5}"); A(f"v_add_u32 v{T+5}, s{sT}, v{T+5}")
    for rt in range(4):
        for t in range(4):
            A(f"ds_write_b128 v{T+5}, {vr(acc(t, rt), 4)} offset:{rt*16*272 + t*64}")
    A("s_waitcnt lgkmcnt(0)"); A("s_barrier")
    A(f"v_mul_u32_u24 v{T+5}, 272, v{T}"); A(f"v_lshl_add_u32 v{T+5}, v{T+1}, 5, v{T+5}"); A(f"v_add_u32 v{T+5}, {RED}, v{T+5}")
    R = 24
    for p in range(2):
        for w in range(4):
            A(f"ds_read_b128 {vr(R+32*p+8*w,4)}, v{T+5} offset:{w*17408 + p*32*272}")
            A(f"ds_read_b128 {vr(R+32*p+8*w+4,4)}, v{T+5} offset:{w*17408 + p*32*272 + 16}")
    A("s_waitcnt vmcnt(0)")
    for p in range(2):
        base = R + 32*p
        A(f"s_waitcnt lgkmcnt({8 if p == 0 else 0})")
        for w in range(1, 4):
            for e in range(8): A(f"v_add_f32 v{base+e}, v{base+e}, v{base+8*w+e}")
        for i in range(4):
            A(f"v_lshlrev_b32 v{T+10}, 16, v{vRes+4*p+i}"); A(f"v_and_b32 v{T+11}, 0xffff0000, v{vRes+4*p+i}")
            A(f"v_add_f32 v{base+2*i}, v{base+2*i}, v{T+10}"); A(f"v_add_f32 v{base+2*i+1}, v{base+2*i+1}, v{T+11}")
        pk = base + 8
        for i in range(4): A(f"v_cvt_pk_bf16_f32 v{pk+i}, v{base+2*i}, v{base+2*i+1}")
        A(f"buffer_store_dwordx4 {vr(pk,4)}, v{T+4}, s[{S_O1}:{S_O1+3}], s{46+p} offen" + (STFLAG if k3 else ""))
        if k3:
            if p == 0:
                A(f"v_lshrrev_b32 v{T+12}, 4, v{T}"); A(f"v_lshlrev_b32 v{T+12}, 14, v{T+12}")
                A(f"v_lshrrev_b32 v{T+13}, 2, v{T+1}"); A(f"v_lshl_add_u32 v{T+12}, v{T+13}, 10, v{T+12}")
                A(f"v_and_b32 v{T+13}, 3, v{T+1}"); A(f"v_lshl_add_u32 v{T+12}, v{T+13}, 8, v{T+12}")
                A(f"v_and_b32 v{T+13}, 15, v{T}"); A(f"v_lshl_add_u32 v{T+12}, v{T+13}, 4, v{T+12}")
                A(f"s_lshl_b32 s48, s{sRB}, 16"); A(f"s_lshl_b32 s{sT}, s{sCB}, 11"); A(f"s_add_u32 s48, s48, s{sT}"); A("s_add_u32 s49, s48, 32768")
            A(f"buffer_store_dwordx4 {vr(pk,4)}, v{T+12}, s[{S_O2}:{S_O2+3}], s{48+p} offen{STFLAG}")
            u = base + 16
            for i in range(4):
                A(f"v_lshlrev_b32 v{u+2*i}, 16, v{pk+i}"); A(f"v_and_b32 v{u+2*i+1}, 0xffff0000, v{pk+i}")
            s1, s2 = base + 24, base + 25
            A(f"v_add_f32 v{s1}, v{u}, v{u+1}"); A(f"v_mul_f32 v{s2}, v{u}, v{u}")
            A(f"v_fmac_f32 v{s2}, v{u+1}, v{u+1}")
            for e in range(2, 8):
                A(f"v_add_f32 v{s1}, v{s1}, v{u+e}"); A(f"v_fmac_f32 v{s2}, v{u+e}, v{u+e}")
            for dpp in ("quad_perm:[1,0,3,2]", "quad_perm:[2,3,0,1]", "row_half_mirror"):
                A("s_nop 1")
                A(f"v_add_f32_dpp v{s1}, v{s1}, v{s1} {dpp} row_mask:0xf bank_mask:0xf")
                A(f"v_add_f32_dpp v{s2}, v{s2}, v{s2} {dpp} row_mask:0xf bank_mask:0xf")
            if p == 0:
                A(f"v_lshlrev_b32 v{T+14}, 6, v{T}")
                A(f"s_lshl_b32 s50, s{sRB}, 12"); A(f"s_lshl_b32 s{sT}, s{sCB}, 3"); A(f"s_add_u32 s50, s50, s{sT}"); A("s_add_u32 s51, s50, 2048")
            A(f"v_cmp_eq_u32 vcc, 0, v{T+1}"); A("s_and_saveexec_b64 s[52:53], vcc")
            A(f"buffer_store_dwordx2 v[{s1}:{s2}], v{T+14}, s[{S_ST}:{S_ST+3}], s{50+p} offen{STFLAG}")
            A("s_mov_b64 exec, s[52:53]")
    if asmlib.PROF:
        A("s_waitcnt vmcnt(0)"); P.stamp(A); A("s_waitcnt lgkmcnt(0)"); P.flush(A, T+20)
    A(f"{L}_END:"); A("s_endpgm")
    return name, 512, 100, 256
def gen_k3(A): return gen_ksplit(A, "k3")
def gen_k5(A): return gen_ksplit(A, "k5")
```

```python
from asmlib import *
import asmlib, struct, sys
def f2u(f): return struct.unpack("<I", struct.pack("<f", f))[0]
STFLAG = " sc0 sc1"
NST = 7
STG = 20480

def gen_k4(A):
    name = "k4_kernel"
    kernel_head(A, name)
    P = Prof(3)
    S_H, S_W, S_ST, S_HH = 16, 20, 24, 28
    sW, sRB, sFB, sT, sT2, sWR, sWC, sAo, sWo, sM0 = 36, 37, 38, 39, 40, 41, 42, 43, 44, 45
    vL, vA, vW, vTrG, vAr = 1, 2, 3, 6, 10
    ACC = 16
    CS = 112
    AF = 128
    WF = 176
    ONE = 208
    MEAN = 212
    RS2 = 218
    T = 224
    def acc(m, rt): return ACC + (m*6 + rt)*4
    def af(par, rt): return AF + par*24 + rt*4
    def wf(par, m): return WF + par*16 + m*4
    A("s_lshr_b32 s4, s2, 3"); A("s_and_b32 s5, s2, 7"); A("s_mul_i32 s5, s5, 31"); A("s_add_u32 s4, s4, s5")
    A("s_cmp_ge_u32 s2, 248"); A("s_cbranch_scc1 K4_END")
    A("s_cmp_ge_u32 s4, 242"); A("s_cbranch_scc1 K4_END")
    P.stamp(A)
    A(f"s_mul_hi_u32 s{sFB}, s4, {(1 << 32)//11 + 1}"); A(f"s_mul_i32 s5, s{sFB}, 11"); A(f"s_sub_u32 s{sRB}, s4, s5")
    A("s_load_dwordx2 s[12:13], s[0:1], 96")
    A(f"v_and_b32 v{vL}, 63, v0")
    A("v_lshrrev_b32 v2, 6, v0"); A("s_nop 0"); A(f"v_readfirstlane_b32 s{sW}, v2")
    A(f"s_lshr_b32 s{sWR}, s{sW}, 1"); A(f"s_and_b32 s{sWC}, s{sW}, 1")
    A("s_waitcnt lgkmcnt(0)")
    A(f"s_add_u32 s{S_W}, s12, {WS_WGF}"); A(f"s_addc_u32 s{S_W+1}, s13, 0"); A(f"s_mov_b32 s{S_W+2}, {22*16*8192}"); A(f"s_mov_b32 s{S_W+3}, 0x00020000")
    A(f"s_add_u32 s{S_H}, s12, {WS_H}"); A(f"s_addc_u32 s{S_H+1}, s13, 0"); A(f"s_mov_b32 s{S_H+2}, {2<<20}"); A(f"s_mov_b32 s{S_H+3}, 0x00020000")
    A(f"s_add_u32 s{S_ST}, s12, {WS_ST}"); A(f"s_addc_u32 s{S_ST+1}, s13, 0"); A(f"s_mov_b32 s{S_ST+2}, {2048*64}"); A(f"s_mov_b32 s{S_ST+3}, 0x00020000")
    A(f"s_add_u32 s{S_HH}, s12, {WS_HH}"); A(f"s_addc_u32 s{S_HH+1}, s13, 0"); A(f"s_mov_b32 s{S_HH+2}, {128*44*1024}"); A(f"s_mov_b32 s{S_HH+3}, 0x00020000")
    A(f"v_lshlrev_b32 v{T}, 4, v{vL}")
    A(f"s_mul_i32 s{sT}, s{sW}, {3*16384}"); A(f"v_add_u32 v{vA}, s{sT}, v{T}")
    A(f"v_add_u32 v12, {16384-1024}, v{vA}"); A(f"v_add_u32 v13, {2*(16384-1024)}, v{vA}")
    A(f"s_mul_i32 s{sAo}, s{sRB}, {12*16384}")
    A(f"s_lshl_b32 s{sT}, s{sW}, 11"); A(f"v_add_u32 v{vW}, s{sT}, v{T}")
    A(f"s_lshl_b32 s{sWo}, s{sFB}, 17")
    A(f"s_mul_i32 s46, s{sW}, 3072")
    A(f"s_lshl_b32 s47, s{sW}, 11"); A("s_add_u32 s47, s47, 12288")
    def loads(ks):
        st = ks % NST
        return [(f"s_add_u32 m0, s46, {st*STG}", SAL), (f"s_add_u32 s48, s{sAo}, {ks*1024}", SAL),
                (f"buffer_load_dwordx4 v{vA}, s[{S_H}:{S_H+3}], s48 offen lds", MEM),
                (f"buffer_load_dwordx4 v12, s[{S_H}:{S_H+3}], s48 offen offset:1024 lds", MEM),
                (f"buffer_load_dwordx4 v13, s[{S_H}:{S_H+3}], s48 offen offset:2048 lds", MEM),
                (f"s_add_u32 m0, s47, {st*STG}", SAL), (f"s_add_u32 s49, s{sWo}, {ks*8192}", SAL),
                (f"buffer_load_dwordx4 v{vW}, s[{S_W}:{S_W+3}], s49 offen lds", MEM),
                (f"buffer_load_dwordx4 v{vW}, s[{S_W}:{S_W+3}], s49 offen offset:1024 lds", MEM)]
    vm = VM()
    NPRE = NST - 1
    for ks in range(NPRE):
        for ins, k in loads(ks):
            A(ins)
            if k == MEM: vm.issue(f"s{ks}")
    A(f"v_and_b32 v{T+1}, 15, v{vL}"); A(f"v_lshrrev_b32 v{T+2}, 4, v{vL}")
    A(f"v_lshlrev_b32 v{T+3}, 6, v{T+1}"); A(f"v_lshl_add_u32 v{T+3}, v{T+2}, 4, v{T+3}")
    A(f"s_mul_i32 s{sT}, s{sRB}, {192*64}"); A(f"s_mul_i32 s{sT2}, s{sWR}, {96*64}"); A(f"s_add_u32 s50, s{sT}, s{sT2}")
    SV = 64
    SV = 232
    for rt in range(6):
        A(f"s_add_u32 s51, s50, {rt*1024}")
        A(f"buffer_load_dwordx4 {vr(SV+4*rt,4)}, v{T+3}, s[{S_ST}:{S_ST+3}], s51 offen"); vm.issue("st")
    A(f"s_mul_i32 s{sT}, s{sWR}, 6144"); A(f"v_add_u32 v{vAr}, s{sT}, v{T}"); A(f"v_add_u32 v{vAr+1}, {3*STG}, v{vAr}")
    A(f"s_lshl_b32 s{sT}, s{sWC}, 11"); A(f"s_add_u32 s{sT}, s{sT}, 12288"); A(f"v_add_u32 v{vTrG}, s{sT}, v{T}"); A(f"v_add_u32 v{vTrG+1}, {3*STG}, v{vTrG}")
    A(f"v_mov_b32 v{T+6}, 0x3f803f80")
    for r in range(4): A(f"v_mov_b32 v{ONE+r}, v{T+6}")
    vAr3, vTr3 = 14, 15
    A(f"v_add_u32 v{vAr3}, {6*STG}, v{vAr}")
    A(f"v_add_u32 v{vTr3}, {6*STG}, v{vTrG}")
    def a_read(ks, par, rt):
        st = ks % NST; w, o = divmod(st, 3)
        b = [vAr, vAr+1, vAr3][w]
        return f"ds_read_b128 {vr(af(par, rt), 4)}, v{b} offset:{o*STG + rt*1024}"
    def w_read(ks, par, m):
        st = ks % NST; w, o = divmod(st, 3)
        b = [vTrG, vTrG+1, vTr3][w]
        return f"ds_read_b128 {vr(wf(par, m), 4)}, v{b} offset:{o*STG + (m//2)*4096 + (m%2)*1024}"
    P.stamp(A)
    A(vm.wait("s0")); A("s_barrier")
    for m in range(4): A(w_read(0, 0, m))
    for rt in range(6): A(a_read(0, 0, rt))
    for ks in range(16):
        par = ks % 2
        ms = []
        for m in range(4):
            ms.append(mfma16(vr(CS+4*m, 4), vr(wf(par, m), 4), vr(ONE, 4), "0" if ks == 0 else vr(CS+4*m, 4)))
            for rt in range(6):
                ms.append(mfma16(vr(acc(m, rt), 4), vr(wf(par, m), 4), vr(af(par, rt), 4), "0" if ks == 0 else vr(acc(m, rt), 4)))
        A("s_waitcnt lgkmcnt(0)")
        if ks + 1 < 16:
            A(vm.wait(f"s{ks+1}")); A("s_barrier")
        W = Weave(ms)
        g = 0
        if ks + 1 < 16:
            for m in range(4): g = W.put(w_read(ks+1, 1-par, m), g, 1, MEM)
            for rt in range(6): g = W.put(a_read(ks+1, 1-par, rt), g, 1, MEM)
        nk = ks + NPRE
        if nk < 16:
            g += 1
            lst = loads(nk)
            for ins, k in lst:
                if k == SAL: g = W.put(ins, g, 1, SAL)
                else: g = W.put(ins, g + 1, 2, MEM); vm.issue(f"s{nk}")
        W.emit(A)
    P.stamp(A)
    A("s_waitcnt vmcnt(0)")
    for rt in range(6):
        b = SV + 4*rt
        A(f"v_add_f32 v{b}, v{b}, v{b+2}"); A(f"v_add_f32 v{b+1}, v{b+1}, v{b+3}")
    for sw in ("v_permlane16_swap_b32", "v_permlane32_swap_b32"):
        for rt in range(6):
            b = SV + 4*rt
            A(f"v_mov_b32 v{b+2}, v{b}"); A(f"v_mov_b32 v{b+3}, v{b+1}")
        A("s_nop 1")
        for rt in range(6):
            b = SV + 4*rt
            A(f"{sw} v{b}, v{b+2}"); A(f"{sw} v{b+1}, v{b+3}")
        A("s_nop 1")
        for rt in range(6):
            b = SV + 4*rt
            A(f"v_add_f32 v{b}, v{b}, v{b+2}"); A(f"v_add_f32 v{b+1}, v{b+1}, v{b+3}")
    for rt in range(6):
        b = SV + 4*rt
        A(f"v_mul_f32 v{MEAN+rt}, {f2u(1/512):#x}, v{b}")
        A(f"v_mul_f32 v{b+1}, {f2u(1/512):#x}, v{b+1}")
        A(f"v_fma_f32 v{b+1}, -v{MEAN+rt}, v{MEAN+rt}, v{b+1}")
        A(f"v_max_f32 v{b+1}, 0, v{b+1}")
        A(f"v_add_f32 v{b+1}, {f2u(1e-5):#x}, v{b+1}")
        A(f"v_rcp_f32 v{RS2+rt}, v{b+1}")
    A("s_nop 0")
    A(f"s_cmp_eq_u32 s{sFB}, 21"); A(f"s_cselect_b32 s{sT}, s{sWC}, 0"); A(f"s_cmp_lg_u32 s{sT}, 0"); A("s_cbranch_scc1 K4_DONE")
    A(f"s_mul_i32 s{sT}, s{sRB}, 12"); A(f"s_mul_i32 s{sT2}, s{sWR}, 6"); A(f"s_add_u32 s{sT}, s{sT}, s{sT2}"); A(f"s_mul_i32 s52, s{sT}, {44*1024}")
    A(f"s_lshl_b32 s{sT}, s{sFB}, 1"); A(f"s_add_u32 s{sT}, s{sT}, s{sWC}"); A(f"s_lshl_b32 s{sT}, s{sT}, 10"); A(f"s_add_u32 s52, s52, s{sT}")
    A(f"v_lshlrev_b32 v{T}, 4, v{vL}")
    for rt in range(6):
        tb = AF + (rt % 2)*16
        for t in range(2):
            for r in range(4):
                g_, u_ = acc(t, rt) + r, acc(2+t, rt) + r
                A(f"v_fma_f32 v{g_}, -v{MEAN+rt}, v{CS+4*t+r}, v{g_}")
                A(f"v_fma_f32 v{u_}, -v{MEAN+rt}, v{CS+4*(2+t)+r}, v{u_}")
                A(f"v_max_f32 v{g_}, 0, v{g_}")
                A(f"v_mul_f32 v{u_}, v{u_}, v{RS2+rt}")
                A(f"v_mul_f32 v{tb+4*t+r}, v{g_}, v{u_}")
        for i in range(4): A(f"v_cvt_pk_bf16_f32 v{tb+8+i}, v{tb+2*i}, v{tb+2*i+1}")
        A(f"buffer_store_dwordx4 {vr(tb+8,4)}, v{T}, s[{S_HH}:{S_HH+3}], s52 offen{STFLAG}")
        A(f"s_add_u32 s52, s52, {44*1024}")
    A("K4_DONE:")
    if asmlib.PROF:
        A("s_waitcnt vmcnt(0)"); P.stamp(A); A("s_waitcnt lgkmcnt(0)"); P.flush(A, T+4)
    A("K4_END:"); A("s_endpgm")
    return name, 256, 100, 256
```

```python
import sys
from asmlib import *
import k1, k2, k35, k4
def build(kernels):
    hdr = Asm(); A = Asm(); D = Asm()
    ref = open("sequential_preLN__compressed_kv_cla__glu_gated_reglu__prompt.s.ref").read().split("\n")
    for l in ref:
        if l.startswith("; Kernarg") or l.startswith(";   offset"): hdr(l)
    descs = []; seen = {}
    for (fn, grid, block, lds) in kernels:
        if fn not in seen:
            seen[fn] = fn(A); descs.append(seen[fn])
        name = seen[fn][0]
        hdr(f"; @launch kernel={name} grid=({grid},1,1) block=({block},1,1) lds={lds}")
    hdr('.amdgcn_target "amdgcn-amd-amdhsa--gfx950"')
    for d in descs: kernel_desc(D, *d)
    return hdr.text() + A.text() + D.text()
if __name__ == "__main__":
    import asmlib
    if "--prof" in sys.argv:
        asmlib.PROF = True; sys.argv.remove("--prof")
    if "--profcyc" in sys.argv:
        asmlib.PROF = True; asmlib.PROF_INS = "s_memtime"; sys.argv.remove("--profcyc")
    ks = [(k1.gen_k1, 256, 256, 163840), (k2.gen_k2, 256, 256, 163840), (k35.gen_k3, 256, 256, 69632), (k4.gen_k4, 248, 256, 143360), (k35.gen_k5, 256, 256, 69632)]
    import os
    sel = os.environ.get("KSEL")
    if sel: ks = [ks[int(c)-1] for c in sel]
    out = sys.argv[1] if len(sys.argv) > 1 else "cur.s"
    open(out, "w").write(build(ks))
```
